```python
import torch

def _softmax(x, axis=-1):
    return torch.softmax(x, dim=axis)
def _gelu(x):
    return torch.nn.functional.gelu(x, approximate="tanh")
def _silu(x):
    return torch.nn.functional.silu(x)
def _sigmoid(x):
    return torch.sigmoid(x)
def _layernorm(x, axis=-1, eps=1e-5):
    m = x.mean(dim=axis, keepdim=True)
    v = x.var(dim=axis, keepdim=True, unbiased=False)
    return (x - m) / torch.sqrt(v + eps)
def _scatter_add(tgt, idx, src, axis=0):
    return tgt.clone().index_add_(axis, idx, src)
def _segment_sum(src, seg, n):
    out = torch.zeros((n,) + src.shape[1:], dtype=src.dtype)
    return out.index_add_(0, seg, src)
def _pad(x, pw):
    flat = tuple(v for pair in reversed(pw) for v in pair)
    return torch.nn.functional.pad(x, flat)

kernel_name = 'standalone__mha_block_cached__near_ridge'

def setup_inputs():

    _w = (lambda a: (lambda t: t.to(torch.bfloat16) if t.is_floating_point() else t)(torch.as_tensor(a)))
    B, Sq, D = 32, 160, 576
    H, Sk, Dh = 32, 512, 128
    return {
        "x": _w((lambda *s: torch.randn(*s, dtype=torch.bfloat16) * 0.8)(B, Sq, D)),
        "k_cache": _w((lambda *s: torch.randn(*s, dtype=torch.bfloat16) * 0.8)(B, H, Sk, Dh)),
        "v_cache": _w((lambda *s: torch.randn(*s, dtype=torch.bfloat16) * 0.05)(B, H, Sk, Dh)),
        "wq": _w((lambda *s: torch.randn(*s, dtype=torch.bfloat16) * 0.8)(D, H * Dh) * (D ** -0.5)),
        "wo": _w((lambda *s: torch.randn(*s, dtype=torch.bfloat16) * 0.05)(H * Dh, D) * ((H * Dh) ** -0.5)),
    }

def reference(x, k_cache, v_cache, wq, wo):
    B, Sq, D = x.shape
    H, Dh = 32, 128
    q = (lambda x, *d: x.permute(*d))((x @ wq).reshape(B, Sq, H, Dh), 0, 2, 1, 3)
    scores = torch.einsum("bhqd,bhkd->bhqk", q, k_cache) * (Dh ** -0.5)
    p = _softmax(scores, axis=-1)
    o = torch.einsum("bhqk,bhkd->bhqd", p, v_cache)
    return (lambda x, *d: x.permute(*d))(o, 0, 2, 1, 3).reshape(B, Sq, H * Dh) @ wo
```

```python
import sys, struct, math

NAME = "standalone__mha_block_cached__near_ridge"
OPT = dict(nt=1, thr_log2=24)
for a in sys.argv[2:]:
    k, v = a.split("=")
    OPT[k] = int(v)

def f32bits(x):
    return struct.unpack("<I", struct.pack("<f", x))[0]

class Asm:
    def __init__(self):
        self.lines = []
        self.vq = []
    def e(self, s):
        self.lines.append("  " + s)
    def label(self, s):
        self.lines.append(s + ":")
    def c(self, s):
        self.lines.append("  ; " + s)
    def vm(self, s, tag):
        self.e(s)
        self.vq.append(tag)
    def vmn(self, tags):
        last = -1
        for i, t in enumerate(self.vq):
            if t in tags:
                last = i
        if last < 0:
            return None
        n = len(self.vq) - 1 - last
        self.vq = self.vq[last + 1:]
        return min(n, 63)
    def wait(self, tags=(), lgkm=None, vm0=False):
        n = self.vmn(tags) if tags else None
        if vm0:
            n = 0
            self.vq = []
        s = "s_waitcnt"
        if n is not None:
            s += f" vmcnt({n})"
        if lgkm is not None:
            s += f" lgkmcnt({lgkm})"
        if s != "s_waitcnt":
            self.e(s)
    def weave(self, mf, fill):
        for i, m in enumerate(mf):
            self.e(m)
            for (s, tag) in fill.get(i, []):
                if tag is None:
                    self.e(s)
                else:
                    self.vm(s, tag)

def v(i, n=1):
    return f"v{i}" if n == 1 else f"v[{i}:{i+n-1}]"
def a(i, n=1):
    return f"a{i}" if n == 1 else f"a[{i}:{i+n-1}]"
MF = "v_mfma_f32_16x16x32_bf16"

OWS = 0
WOT = 320 * 128 * 1024
WS_USED = WOT + 36 * 128 * 1024
OOB = 0x7F000000

vKd = 1; vVd = 5; vWd = 7; vXo = 11; vKa = 12; vVa = 16; vWa = 24; vOo = 28; vWoL = 29
vT = 30
vQ = 36; vX = 36; vAcc = 96
vKf = 116; vS = 180; vP = 196; vC = 216; vE = 236
aO = 0; aVf = 160; aWf = 160; aL = 224; aOne = 244
L_W = [0, 8192, 16384]
L_V = [24576, 32768, 40960, 16384]
L_K0 = 49152
sX, sK, sV, sWQ, sWS, sWO = 8, 12, 16, 20, 24, 28
sW4 = 32; sU = 33; sKb = 34; sKn = 35; sWb = 36; sXq = 37; sOb = 42; sWoG = 43; sWoS = 45
sJob = 46; sScale = 48; sT0 = 50; sT1 = 51; sWn = 52; sFlag = 53; sU0 = 54; sWave = 55; sSlow = 56; sThr = 57
sT2 = 58; sT3 = 59
NT = " nt" if OPT["nt"] else ""

def srd(A, s, kaoff, nbytes, tmp):
    pass

def dma_kv(kind, jj, pieces=(0, 1, 2, 3)):
    base = sKb if jj < 16 else sKn
    j = jj % 16
    slot = (L_K0 + 8192 * (jj % 4)) if kind == "K" else L_V[jj % 4]
    out = [(f"s_add_u32 m0, s{sW4}, {slot}", None),
           (f"s_add_u32 s{sT0}, s{base}, {j*8192}", None)]
    for pp in pieces:
        vo = vKd + pp if kind == "K" else vVd + (pp & 1)
        r = sK if kind == "K" else sV
        out.append((f"buffer_load_dwordx4 v{vo}, s[{r}:{r+3}], s{sT0} offen offset:{pp*1024}{NT} lds", f"{kind}{jj}"))
    return out

def dma_w(t, nxt=False):
    base = sWn if nxt else sWb
    out = [(f"s_add_u32 m0, s{sW4}, {L_W[t%3]}", None),
           (f"s_add_u32 s{sT1}, s{base}, {t*262144}", None)]
    for pp in range(4):
        out.append((f"buffer_load_dwordx4 v{vWd+pp}, s[{sWQ}:{sWQ+3}], s{sT1} offen offset:{pp*1024} lds", f"W{t}"))
    return out

def ld_x(t):
    return [(f"buffer_load_dwordx4 {v(vX + 20*(t%3) + 4*qt, 4)}, v{vXo}, s[{sX}:{sX+3}], s{sXq+qt} offen offset:{64*t}", f"X{t}")
            for qt in range(5)]

def rd_w(t):
    out = []
    for T in range(8):
        for hb in range(2):
            out.append((f"ds_read_b64_tr_b16 {a(aWf + 32*(t%2) + 4*T + 2*hb, 2)}, v{vWa + T//2} offset:{L_W[t%3] + 8*(T%2) + 1024*hb}", None))
    return out

def rd_k(j):
    return [(f"ds_read_b128 {v(vKf + 32*(j%2) + 16*aa + 4*t, 4)}, v{vKa+t} offset:{8192*(j%4) + 4096*aa}", None)
            for aa in range(2) for t in range(4)]

def rd_v(j):
    return [(f"ds_read_b64_tr_b16 {a(aVf + 32*(j%2) + 4*T + 2*hb, 2)}, v{vVa+T} offset:{L_V[j%4] + 4096*hb}", None)
            for T in range(8) for hb in range(2)]

def spread(fill, items, slots):
    for k, grp in enumerate(items):
        fill.setdefault(slots[k], []).extend(grp)

def emit_list(A, lst):
    for s, tag in lst:
        if tag is None: A.e(s)
        else: A.vm(s, tag)

def qproj(A, cold):
    A.c("---- Q-proj " + ("cold" if cold else "warm"))
    if cold:
        for t in range(3): emit_list(A, dma_w(t))
        for t in range(2): emit_list(A, ld_x(t))
    kvorder = [("K",0),("K",1),("V",0),("K",2),("V",1),("K",3),("V",2)]
    A.wait(["W0"])
    A.e("s_barrier")
    emit_list(A, rd_w(0))
    for t in range(18):
        A.wait([f"W{t+1}", f"X{t}"], lgkm=0)
        A.e("s_barrier")
        mf = []
        for T in range(8):
            for qt in range(5):
                f = (T//2)*5 + qt
                d = v(vAcc + 8*f + 4*(T%2), 4)
                mf.append(f"{MF} {d}, {a(aWf + 32*(t%2) + 4*T, 4)}, {v(vX + 20*(t%3) + 4*qt, 4)}, {'0' if t == 0 else d}")
        fill = {}
        groups = []
        if t + 3 <= 17:
            w = dma_w(t+3)
            groups += [w[0:3], [w[3]], [w[4]], [w[5]]]
        if t + 2 <= 17:
            groups += [[x] for x in ld_x(t+2)]
        if cold and t < 14:
            kind, jj = kvorder[t//2]
            kv = dma_kv(kind, jj, pieces=(0,1) if t % 2 == 0 else (2,3))
            groups += [kv[0:3], [kv[3]]]
        rds = [[r] for r in rd_w(t+1)] if t + 1 <= 17 else []
        spread(fill, rds, list(range(0, 32, 2)))
        spread(fill, groups, list(range(1, 40, 3)))
        A.weave(mf, fill)
    A.e("s_nop 7")
    for f in range(20):
        b = vAcc + 8*f
        for i in range(8):
            A.e(f"v_mul_f32 v{b+i}, s{sScale}, v{b+i}")
        for i in range(4):
            A.e(f"v_cvt_pk_bf16_f32 v{vQ+4*f+i}, v{b+2*i}, v{b+2*i+1}")

def qk_mf(j, qt, sb, czero=False):
    mf = []
    for t in range(4):
        for aa in range(2):
            d = v(vS + 8*sb + 4*aa, 4)
            c = d if t > 0 else ("0" if czero else v(vC + 4*qt, 4))
            mf.append(f"{MF} {d}, {v(vKf + 32*(j%2) + 16*aa + 4*t, 4)}, {v(vQ + 4*(t*5+qt), 4)}, {c}")
    return mf

def pv_mf(j, qt):
    mf = []
    for T in range(8):
        d = a(aO + 32*qt + 4*T, 4)
        mf.append(f"{MF} {d}, {a(aVf + 32*(j%2) + 4*T, 4)}, {v(vP + 4*qt, 4)}, {'0' if j == 0 else d}")
    d = a(aL + 4*qt, 4)
    mf.append(f"{MF} {d}, {a(aOne, 4)}, {v(vP + 4*qt, 4)}, {'0' if j == 0 else d}")
    return mf

def softmax_ops(sb, qt):
    s = vS + 8*sb
    ex = [[(f"v_exp_f32 v{s+i}, v{s+i}", None)] for i in range(8)]
    cv = [(f"v_cvt_pk_bf16_f32 v{vP+4*qt+i}, v{s+2*i}, v{s+2*i+1}", None) for i in range(4)]
    return ex, cv

def lane_max(A, m, t):
    A.e(f"v_mov_b32 v{t}, v{m}")
    A.e("s_nop 1")
    A.e(f"v_permlane32_swap_b32 v{t}, v{m}")
    A.e("s_nop 1")
    A.e(f"v_max_f32 v{m}, v{t}, v{m}")
    A.e(f"v_mov_b32 v{t}, v{m}")
    A.e("s_nop 1")
    A.e(f"v_permlane16_swap_b32 v{t}, v{m}")
    A.e("s_nop 1")
    A.e(f"v_max_f32 v{m}, v{t}, v{m}")

def maxpass(A):
    A.c("---- max pass (fallback)")
    for qt in range(5):
        A.e(f"v_mov_b32 v{vE+qt}, 0xff800000")
    A.e(f"s_mov_b32 s{sT2}, s{sKb}")
    A.e(f"s_add_u32 s{sT3}, s{sKb}, 131072")
    A.label("L_maxloop")
    A.e("s_barrier")
    A.e(f"s_add_u32 m0, s{sW4}, {L_W[0]}")
    A.e("s_nop 0")
    for pp in range(4):
        A.e(f"buffer_load_dwordx4 v{vKd+pp}, s[{sK}:{sK+3}], s{sT2} offen offset:{pp*1024} lds")
    A.e("s_waitcnt vmcnt(0)")
    A.e("s_barrier")
    for t in range(4):
        A.e(f"v_subrev_u32 v{vT+t}, {L_K0}, v{vKa+t}")
    for aa in range(2):
        for t in range(4):
            A.e(f"ds_read_b128 {v(vKf + 16*aa + 4*t, 4)}, v{vT+t} offset:{L_W[0] + 4096*aa}")
    A.e("s_waitcnt lgkmcnt(0)")
    for qt in range(5):
        for m in qk_mf(0, qt, 0, czero=True): A.e(m)
        A.e("s_nop 7")
        s = vS
        for i in range(4):
            A.e(f"v_max3_f32 v{vE+qt}, v{s+2*i}, v{s+2*i+1}, v{vE+qt}")
        A.e("s_nop 3")
    A.e(f"s_add_u32 s{sT2}, s{sT2}, 8192")
    A.e(f"s_cmp_lt_u32 s{sT2}, s{sT3}")
    A.e("s_cbranch_scc1 L_maxloop")
    for qt in range(5):
        lane_max(A, vE+qt, vT)
        for i in range(4):
            A.e(f"v_sub_f32 v{vC+4*qt+i}, 0, v{vE+qt}")
    A.e("s_barrier")

def attention(A):
    A.c("---- attention prologue")
    A.wait(vm0=True)
    A.e("s_barrier")
    A.e(f"s_cmp_eq_u32 s{sSlow}, 0")
    A.e("s_cbranch_scc1 L_nomax")
    maxpass(A)
    A.label("L_nomax")
    emit_list(A, rd_k(0))
    emit_list(A, dma_kv("V", 3))
    emit_list(A, rd_k(1))
    emit_list(A, rd_v(0))
    A.wait(lgkm=15)
    for m in qk_mf(0, 0, 1, czero=True): A.e(m)
    for qt in range(5):
        sb = (qt + 1) % 2
        s = vS + 8*sb
        if qt < 4:
            for m in qk_mf(0, qt+1, qt % 2, czero=True): A.e(m)
        else:
            A.e("s_nop 7")
        m = vT; t = vT + 1
        A.e(f"v_max3_f32 v{m}, v{s}, v{s+1}, v{s+2}")
        A.e(f"v_max3_f32 v{m}, v{s+3}, v{s+4}, v{m}")
        A.e(f"v_max3_f32 v{m}, v{s+5}, v{s+6}, v{m}")
        A.e(f"v_max_f32 v{m}, v{s+7}, v{m}")
        lane_max(A, m, t)
        A.e(f"v_sub_f32 v{m}, 0, v{m}")
        for i in range(4):
            A.e(f"v_cndmask_b32 v{vC+4*qt+i}, v{m}, v{vC+4*qt+i}, s[60:61]")
        for i in range(8):
            A.e(f"v_add_f32 v{s+i}, v{s+i}, v{vC+4*qt}")
        if qt < 4:
            ex, cv = softmax_ops(sb, qt)
            for g in ex: emit_list(A, g)
            A.e("s_nop 0")
            emit_list(A, cv)
    for j in range(16):
        A.c(f"---- iter {j}")
        A.wait([f"K{j+2}", f"V{j+1}"] if j < 15 else [], lgkm=0)
        A.e("s_barrier")
        vmg = []
        def addkv(kind, jj):
            kv = dma_kv(kind, jj)
            vmg.extend([kv[0:3], [kv[3]], [kv[4]], [kv[5]]])
        if j == 0: addkv("K", 4)
        if j + 5 <= 19: addkv("K", j+5)
        if j + 4 <= 18: addkv("V", j+4)
        if j == 14 or j == 15:
            for t in ((0, 1) if j == 14 else (2,)):
                w = dma_w(t, nxt=True)
                vmg.extend([w[0:3], [w[3]], [w[4]], [w[5]]])
        if j == 14:
            for i in range(3):
                for e8 in range(8):
                    vmg.append([(f"buffer_load_ushort v{vKf + 8*i + e8}, v{vWoL}, s[{sWO}:{sWO+3}], s{sWoG + e8//4} offen offset:{(e8%4)*1152 + 32*i}", "G")])
        if j == 15:
            for t in range(2):
                vmg.extend([[x] for x in ld_x(t)])
        rds = []
        if j + 2 <= 15: rds += [[r] for r in rd_k(j+2)]
        if j + 1 <= 15: rds += [[r] for r in rd_v(j+1)]
        others = []
        i1 = i2 = 0
        while i1 < len(vmg) or i2 < len(rds):
            if i2 < len(rds): others.append(rds[i2]); i2 += 1
            if i1 < len(vmg): others.append(vmg[i1]); i1 += 1
        for qt in range(5):
            n = 5*j + qt
            mf = (qk_mf(j+1, qt, n % 2) if j < 15 else []) + pv_mf(j, qt)
            fill = {}
            nm = len(mf)
            do_sm = (j < 15) or qt == 0
            free = list(range(nm))
            if do_sm:
                ex, cv = softmax_ops((n-1) % 2, (qt - 1) % 5)
                if nm == 17:
                    exs = [0, 2, 4, 6, 8, 10, 12, 13]; cvs = [14, 15]
                else:
                    exs = [0, 1, 2, 3, 4, 5, 6, 7]; cvs = [8, 8]
                spread(fill, ex, exs)
                if cvs[0] == 8: fill.setdefault(8, [])
                fill.setdefault(cvs[0], []).extend(cv[0:2])
                fill.setdefault(cvs[1], []).extend(cv[2:4])
                free = [s for s in range(nm) if s not in exs and s not in cvs]
                if not free: free = [8]
            rem = 5 - qt
            k = -(-len(others) // rem) if qt < 4 else len(others)
            k = max(k, min(len(others), len(free)))
            take, others = others[:k], others[k:]
            for idx, g in enumerate(take):
                fill.setdefault(free[idx % len(free)] if len(take) <= len(free) else free[idx * len(free) // len(take)], []).extend(g)
            A.weave(mf, fill)
    A.c("---- epilogue")
    A.e("s_nop 7")
    A.e("s_mov_b64 s[62:63], 0")
    for qt in range(5):
        A.e(f"v_accvgpr_read_b32 v{vC+qt}, a{aL+4*qt}")
    for qt in range(5):
        A.e(f"v_cmp_nlt_f32 vcc, v{vC+qt}, v{vT+5}")
        A.e(f"v_rcp_f32 v{vC+qt}, v{vC+qt}")
        A.e("s_or_b64 s[62:63], s[62:63], vcc")
    k = 0
    for qt in range(5):
        for jp in range(4):
            tb = [vS, vS+8, vP, vP+8][k % 4]
            ob = vE + 4*(k % 4)
            k += 1
            for i in range(8):
                A.e(f"v_accvgpr_read_b32 v{tb+i}, a{aO + 32*qt + 8*jp + i}")
            for i in range(8):
                A.e(f"v_mul_f32 v{tb+i}, v{tb+i}, v{vC+qt}")
            for i in range(4):
                A.e(f"v_cvt_pk_bf16_f32 v{ob+i}, v{tb+2*i}, v{tb+2*i+1}")
            if jp == 0:
                A.e(f"s_add_u32 s{sT0}, s{sOb}, {qt*131072}")
            A.vm(f"buffer_store_dwordx4 {v(ob,4)}, v{vOo}, s[{sWS}:{sWS+3}], s{sT0} offen offset:{jp*1024}", "ST")
    A.wait(["G"])
    for i in range(3):
        for p in range(4):
            A.e(f"v_lshl_or_b32 v{vKf+32+4*i+p}, v{vKf+8*i+2*p+1}, 16, v{vKf+8*i+2*p}")
        A.e(f"s_add_u32 s{sT0}, s{sWoS}, {i*131072}")
        A.vm(f"buffer_store_dwordx4 {v(vKf+32+4*i,4)}, v{vOo}, s[{sWS}:{sWS+3}], s{sT0} offen", "ST")

def unit_setup(A):
    A.e(f"s_lshl_b32 s{sKb}, s{sU}, 17")
    A.e(f"s_add_u32 s{sKn}, s{sKb}, 131072")
    A.e(f"s_and_b32 s{sT0}, s{sU}, 31")
    A.e(f"s_lshl_b32 s{sWb}, s{sT0}, 8")
    A.e(f"s_add_u32 s{sWn}, s{sWb}, 256")
    A.e(f"s_cmp_eq_u32 s{sJob}, 0")
    A.e(f"s_cselect_b32 s{sKn}, s{sKn}, {OOB}")
    A.e(f"s_cselect_b32 s{sWn}, s{sWn}, {OOB}")
    A.e(f"s_lshr_b32 s{sT1}, s{sU}, 5")
    A.e(f"s_mul_i32 s{sT1}, s{sT1}, 10")
    A.e(f"s_mul_i32 s{sT2}, s{sWave}, 5")
    A.e(f"s_add_u32 s{sT1}, s{sT1}, s{sT2}")
    A.e(f"s_lshl_b32 s{sT1}, s{sT1}, 17")
    A.e(f"s_lshl_b32 s{sT0}, s{sT0}, 12")
    A.e(f"s_add_u32 s{sOb}, s{sT1}, s{sT0}")
    A.e(f"s_lshl_b32 s{sT0}, s{sU}, 1")
    A.e(f"s_add_u32 s{sT0}, s{sT0}, s{sWave}")
    A.e(f"s_lshr_b32 s{sT1}, s{sT0}, 4")
    A.e(f"s_and_b32 s{sT0}, s{sT0}, 15")
    A.e(f"s_mul_i32 s{sT2}, s{sT1}, {32*1152}")
    A.e(f"s_mul_i32 s{sT3}, s{sT0}, 96")
    A.e(f"s_add_u32 s{sWoG}, s{sT2}, s{sT3}")
    A.e(f"s_add_u32 s{sWoG+1}, s{sWoG}, {16*1152}")
    A.e(f"s_mul_i32 s{sT2}, s{sT0}, {3*131072}")
    A.e(f"s_lshl_b32 s{sT3}, s{sT1}, 10")
    A.e(f"s_add_u32 s{sT2}, s{sT2}, s{sT3}")
    A.e(f"s_add_u32 s{sWoS}, s{sT2}, {WOT}")
    A.e(f"s_cmp_lt_u32 s{sT0}, 12")
    A.e(f"s_cselect_b32 s{sWoG}, s{sWoG}, {OOB}")
    A.e(f"s_cselect_b32 s{sWoG+1}, s{sWoG+1}, {OOB}")
    A.e(f"s_cselect_b32 s{sWoS}, s{sWoS}, {OOB}")
    A.e(f"s_cmp_lg_u32 s{sSlow}, 0")
    A.e("s_cselect_b64 s[60:61], -1, 0")

def mk_srd(A, s, p, nbytes):
    A.e(f"s_mov_b32 s{s}, s{p}")
    A.e(f"s_and_b32 s{s+1}, s{p+1}, 0xffff")
    A.e(f"s_mov_b32 s{s+2}, {nbytes}")
    A.e(f"s_mov_b32 s{s+3}, 0x00020000")

def kernel_a(A):
    A.lines.append(".p2align 8")
    A.label("attn_kernel")
    A.e("s_cmp_ge_u32 s2, 512")
    A.e("s_cbranch_scc1 L_a_done")
    A.e("s_load_dwordx8 s[64:71], s[0:1], 0")
    A.e("s_load_dwordx2 s[72:73], s[0:1], 32")
    A.e("s_load_dwordx2 s[74:75], s[0:1], 56")
    L, g, q, r, c = vT, vT+1, vT+2, vT+3, vT+4
    A.e(f"v_lshrrev_b32 v{g}, 6, v0")
    A.e(f"v_and_b32 v{L}, 63, v0")
    A.e("s_nop 0")
    A.e(f"v_readfirstlane_b32 s{sWave}, v{g}")
    A.e(f"v_lshrrev_b32 v{g}, 4, v{L}")
    A.e(f"v_and_b32 v{q}, 15, v{L}")
    A.e(f"v_lshrrev_b32 v{r}, 2, v{q}")
    A.e(f"v_and_b32 v{c}, 3, v{L}")
    A.e(f"s_lshl_b32 s{sW4}, s{sWave}, 12")
    t0, t1 = vE, vE+1
    for pp in range(4):
        A.e(f"v_add_u32 v{t0}, {4*pp}, v{g}")
        A.e(f"v_xor_b32 v{t0}, v{t0}, v{q}")
        A.e(f"v_lshlrev_b32 v{t0}, 4, v{t0}")
        A.e(f"v_lshl_add_u32 v{t0}, v{g}, 8, v{t0}")
        A.e(f"v_add_u32 v{vKd+pp}, s{sW4}, v{t0}")
    for p1 in range(2):
        A.e(f"v_add_u32 v{t0}, {4*p1}, v{g}")
        A.e(f"v_lshlrev_b32 v{t0}, 1, v{t0}")
        A.e(f"v_xor_b32 v{t0}, v{t0}, v{q}")
        A.e(f"v_lshlrev_b32 v{t0}, 4, v{t0}")
        A.e(f"v_lshl_add_u32 v{t0}, v{g}, 8, v{t0}")
        A.e(f"v_add_u32 v{vVd+p1}, s{sW4}, v{t0}")
    A.e(f"s_lshl_b32 s{sT0}, s{sWave}, 17")
    for pp in range(4):
        A.e(f"v_lshlrev_b32 v{t0}, 2, v{g}")
        A.e(f"v_xor_b32 v{t0}, v{t0}, v{q}")
        A.e(f"v_lshlrev_b32 v{t0}, 4, v{t0}")
        A.e(f"v_lshl_add_u32 v{t0}, v{g}, 13, v{t0}")
        A.e(f"v_add_u32 v{t0}, {pp*32768 - pp*1024}, v{t0}")
        A.e(f"v_add_u32 v{vWd+pp}, s{sT0}, v{t0}")
    A.e(f"s_mul_i32 s{sT0}, s{sWave}, {80*1152}")
    A.e(f"v_mul_u32_u24 v{t0}, 1152, v{q}")
    A.e(f"v_lshl_add_u32 v{t0}, v{g}, 4, v{t0}")
    A.e(f"v_add_u32 v{vXo}, s{sT0}, v{t0}")
    for t in range(4):
        A.e(f"v_add_u32 v{t0}, {4*t}, v{g}")
        A.e(f"v_xor_b32 v{t0}, v{t0}, v{q}")
        A.e(f"v_lshlrev_b32 v{t0}, 4, v{t0}")
        A.e(f"v_lshl_add_u32 v{t0}, v{q}, 8, v{t0}")
        A.e(f"v_add_u32 v{vKa+t}, {L_K0}, v{t0}")
    A.e(f"v_and_b32 v{t1}, 1, v{g}")
    A.e(f"v_lshl_add_u32 v{t1}, v{t1}, 2, v{r}")
    A.e(f"v_lshlrev_b32 v{t1}, 1, v{t1}")
    for T in range(8):
        A.e(f"v_lshrrev_b32 v{t0}, 1, v{c}")
        A.e(f"v_add_u32 v{t0}, {2*T}, v{t0}")
        A.e(f"v_xor_b32 v{t0}, v{t0}, v{t1}")
        A.e(f"v_lshlrev_b32 v{t0}, 4, v{t0}")
        A.e(f"v_lshl_add_u32 v{vVa+T}, v{g}, 2, v{r}")
        A.e(f"v_lshl_add_u32 v{t0}, v{vVa+T}, 8, v{t0}")
        A.e(f"v_and_b32 v{vVa+T}, 1, v{c}")
        A.e(f"v_lshl_add_u32 v{vVa+T}, v{vVa+T}, 3, v{t0}")
    for tt in range(4):
        A.e(f"v_xor_b32 v{t0}, {tt}, v{r}")
        A.e(f"v_lshl_add_u32 v{t0}, v{t0}, 2, v{c}")
        A.e(f"v_lshlrev_b32 v{t0}, 4, v{t0}")
        A.e(f"v_lshl_add_u32 v{t1}, v{g}, 3, v{r}")
        A.e(f"v_lshl_add_u32 v{vWa+tt}, v{t1}, 8, v{t0}")
    A.e(f"v_lshlrev_b32 v{vOo}, 4, v{L}")
    A.e(f"v_mul_u32_u24 v{t0}, {4*1152}, v{g}")
    A.e(f"v_lshl_add_u32 v{vWoL}, v{q}, 1, v{t0}")
    A.e(f"v_mov_b32 v{t0}, 0x3f803f80")
    for i in range(4):
        A.e(f"v_accvgpr_write_b32 a{aOne+i}, v{t0}")
    A.e(f"v_mov_b32 v{vT+5}, {f32bits(2.0**OPT['thr_log2'])}")
    A.e(f"s_mov_b32 s{sScale}, {f32bits(math.log2(math.e)/math.sqrt(128.0))}")
    A.e(f"s_and_b32 s{sT0}, s2, 7")
    A.e(f"s_lshr_b32 s{sT1}, s2, 3")
    A.e(f"s_lshr_b32 s{sT2}, s{sT0}, 1")
    A.e(f"s_lshl_b32 s{sT2}, s{sT2}, 3")
    A.e(f"s_and_b32 s{sT3}, s{sT1}, 7")
    A.e(f"s_add_u32 s{sT2}, s{sT2}, s{sT3}")
    A.e(f"s_and_b32 s{sT0}, s{sT0}, 1")
    A.e(f"s_lshl_b32 s{sT0}, s{sT0}, 3")
    A.e(f"s_lshr_b32 s{sT1}, s{sT1}, 3")
    A.e(f"s_add_u32 s{sT0}, s{sT0}, s{sT1}")
    A.e(f"s_lshl_b32 s{sU0}, s{sT2}, 5")
    A.e(f"s_lshl_b32 s{sT0}, s{sT0}, 1")
    A.e(f"s_add_u32 s{sU0}, s{sU0}, s{sT0}")
    A.e(f"s_mul_i32 s{sXq}, s{sT2}, 184320")
    for qt in range(1, 5):
        A.e(f"s_add_u32 s{sXq+qt}, s{sXq}, {qt*18432}")
    A.e(f"s_mov_b32 s{sU}, s{sU0}")
    A.e(f"s_mov_b32 s{sJob}, 0")
    A.e(f"s_mov_b32 s{sSlow}, 0")
    A.e(f"s_mov_b32 s{sFlag}, 0")
    A.e("s_waitcnt lgkmcnt(0)")
    mk_srd(A, sX, 64, 32*160*576*2)
    mk_srd(A, sK, 66, 134217728)
    mk_srd(A, sV, 68, 134217728)
    mk_srd(A, sWQ, 70, 576*4096*2)
    mk_srd(A, sWO, 72, 576*4096*2)
    mk_srd(A, sWS, 74, WS_USED)
    A.label("L_cold")
    unit_setup(A)
    A.vq = []
    qproj(A, True)
    A.e("s_branch L_att")
    B = Asm()
    attention(B)
    tailq = list(B.vq)
    A.label("L_warm")
    unit_setup(A)
    A.vq = tailq
    qproj(A, False)
    A.label("L_att")
    A.lines += B.lines
    A.e("s_cmp_lg_u64 s[62:63], 0")
    A.e(f"s_cselect_b32 s{sT0}, 1, 0")
    A.e(f"s_and_b32 s{sT1}, s{sJob}, 1")
    A.e(f"s_lshl_b32 s{sT0}, s{sT0}, s{sT1}")
    A.e(f"s_or_b32 s{sFlag}, s{sFlag}, s{sT0}")
    A.e(f"s_add_u32 s{sJob}, s{sJob}, 1")
    A.e(f"s_cmp_eq_u32 s{sJob}, 1")
    A.e("s_cbranch_scc0 L_notwarm")
    A.e(f"s_add_u32 s{sU}, s{sU0}, 1")
    A.e("s_branch L_warm")
    A.label("L_notwarm")
    A.e(f"s_cmp_eq_u32 s{sJob}, 2")
    A.e("s_cbranch_scc0 L_noexch")
    A.e("s_waitcnt vmcnt(0) lgkmcnt(0)")
    A.e("s_barrier")
    A.e(f"v_mov_b32 v{vT}, s{sWave}")
    A.e(f"v_lshlrev_b32 v{vT}, 2, v{vT}")
    A.e(f"v_mov_b32 v{vT+1}, s{sFlag}")
    A.e(f"ds_write_b32 v{vT}, v{vT+1}")
    A.e("s_waitcnt lgkmcnt(0)")
    A.e("s_barrier")
    A.e(f"v_mov_b32 v{vT}, 0")
    A.e(f"ds_read_b64 v[{vT+2}:{vT+3}], v{vT}")
    A.e("s_waitcnt lgkmcnt(0)")
    A.e(f"v_or_b32 v{vT+2}, v{vT+2}, v{vT+3}")
    A.e("s_nop 0")
    A.e(f"v_readfirstlane_b32 s{sSlow}, v{vT+2}")
    A.e("s_nop 3")
    A.e("s_barrier")
    A.label("L_noexch")
    A.e(f"s_and_b32 s{sT0}, s{sSlow}, 3")
    A.e(f"s_cmp_eq_u32 s{sT0}, 0")
    A.e("s_cbranch_scc1 L_a_done")
    A.e(f"s_and_b32 s{sT1}, s{sSlow}, 1")
    A.e(f"s_xor_b32 s{sT1}, s{sT1}, 1")
    A.e(f"s_add_u32 s{sU}, s{sU0}, s{sT1}")
    A.e(f"s_add_u32 s{sT1}, s{sT1}, 1")
    A.e(f"s_andn2_b32 s{sSlow}, s{sSlow}, s{sT1}")
    A.e(f"s_or_b32 s{sSlow}, s{sSlow}, 4")
    A.e("s_waitcnt vmcnt(0) lgkmcnt(0)")
    A.e("s_barrier")
    A.e("s_branch L_cold")
    A.label("L_a_done")
    A.e("s_endpgm")

def kernel_b(A):
    ST = 5
    A.lines.append(".p2align 8")
    A.label("oproj_kernel")
    A.e("s_cmp_ge_u32 s2, 256")
    A.e("s_cbranch_scc1 L_b_done")
    A.e("s_load_dwordx2 s[4:5], s[0:1], 40")
    A.e("s_load_dwordx2 s[6:7], s[0:1], 56")
    A.e("v_lshrrev_b32 v1, 6, v0")
    A.e("v_and_b32 v2, 63, v0")
    A.e("s_nop 0")
    A.e("v_readfirstlane_b32 s3, v1")
    A.e("v_lshlrev_b32 v3, 4, v2")
    A.e("s_and_b32 s16, s2, 7")
    A.e("s_lshl_b32 s16, s16, 3")
    A.e("s_lshr_b32 s17, s2, 5")
    A.e("s_add_u32 s16, s16, s17")
    A.e("s_lshr_b32 s17, s2, 3")
    A.e("s_and_b32 s17, s17, 3")
    A.e("s_lshl_b32 s18, s3, 15")
    A.e(f"s_mul_i32 s20, s16, {5*131072}")
    A.e("s_add_u32 s20, s20, s18")
    for qt in range(1, 5):
        A.e(f"s_add_u32 s{20+qt}, s20, {qt*131072}")
    A.e(f"s_mul_i32 s25, s17, {9*131072}")
    A.e("s_add_u32 s25, s25, s18")
    A.e(f"s_add_u32 s25, s25, {WOT}")
    for i in range(1, 9):
        A.e(f"s_add_u32 s{25+i}, s25, {i*131072}")
    A.e("s_waitcnt lgkmcnt(0)")
    mk_srd(A, 8, 6, WS_USED)
    mk_srd(A, 12, 4, 32*160*576*2)
    def sreg(st, i):
        return (v(8 + 56*st + 4*i, 4) if st < 4 else a(180 + 4*i, 4))
    A.e("v_add_u32 v4, 4096, v3")
    A.e("v_add_u32 v5, 4096, v4")
    A.e("v_add_u32 v6, 4096, v5")
    A.e("v_add_u32 v7, 4096, v6")
    A.e("v_add_u32 v232, 4096, v7")
    A.e("v_add_u32 v233, 4096, v232")
    A.e("v_add_u32 v234, 4096, v233")
    vo = [3, 4, 5, 6, 7, 232, 233, 234]
    def loads(s):
        st = s % ST
        out = []
        order = [0, 5, 1, 2, 3, 4, 6, 7, 8, 9, 10, 11, 12, 13]
        for i in order:
            out.append((f"buffer_load_dwordx4 {sreg(st, i)}, v{vo[s//4]}, s[8:11], s{20+i} offen offset:{(s%4)*1024}", f"L{s}"))
        return out
    A.vq = []
    for s in range(ST - 1):
        emit_list(A, loads(s))
    for s in range(32):
        A.wait([f"L{s}"])
        mf = []
        for i in range(9):
            for qt in range(5):
                d = a(4*(i*5+qt), 4)
                mf.append(f"{MF} {d}, {sreg(s%ST, 5+i)}, {sreg(s%ST, qt)}, {'0' if s == 0 else d}")
        fill = {}
        if s + ST - 1 < 32:
            spread(fill, [[x] for x in loads(s + ST - 1)], list(range(1, 45, 3)))
        A.weave(mf, fill)
    A.e("s_nop 7")
    for w in range(4):
        A.e(f"s_cmp_eq_u32 s3, {w}")
        A.e(f"s_cbranch_scc1 L_b_skipw{w}")
        A.e(f"s_cmp_gt_u32 s3, {w}")
        A.e(f"s_cselect_b32 s18, 1, 0")
        A.e(f"s_sub_u32 s18, s3, s18")
        A.e(f"s_mul_i32 s18, s18, 12288")
        A.e(f"s_add_u32 s18, s18, {w*36864}")
        A.e("v_add_u32 v4, s18, v3")
        for n, ti in enumerate([ti for ti in range(45) if ti % 4 == w]):
            A.e(f"ds_write_b128 v4, {a(4*ti,4)} offset:{n*1024}")
        A.label(f"L_b_skipw{w}")
    A.e("s_waitcnt lgkmcnt(0)")
    A.e("s_barrier")
    A.e("v_and_b32 v5, 15, v2")
    A.e("v_mul_u32_u24 v5, 1152, v5")
    A.e("v_lshrrev_b32 v6, 4, v2")
    A.e("v_lshl_add_u32 v5, v6, 3, v5")
    A.e(f"s_mul_i32 s18, s16, {80*1152}")
    A.e("s_mul_i32 s19, s17, 288")
    A.e("s_add_u32 s18, s18, s19")
    for qt in range(5):
        A.e(f"s_add_u32 s{20+qt}, s18, {qt*16*1152}")
    A.e("s_mul_i32 s18, s3, 36864")
    A.e("v_add_u32 v232, s18, v3")
    for w in range(4):
        A.e(f"s_cmp_lg_u32 s3, {w}")
        A.e(f"s_cbranch_scc1 L_b_skipr{w}")
        tis = [ti for ti in range(45) if ti % 4 == w]
        srcs = [x for x in range(4) if x != w]
        for n, ti in enumerate(tis):
            for k, sw in enumerate(srcs):
                A.e(f"ds_read_b128 {v(8 + 12*n + 4*k, 4)}, v232 offset:{(k*12+n)*1024}")
        for n, ti in enumerate(tis):
            for r in range(4):
                A.e(f"v_accvgpr_read_b32 v{160+4*n+r}, a{4*ti+r}")
        A.e("s_waitcnt lgkmcnt(0)")
        for n, ti in enumerate(tis):
            i, qt = ti // 5, ti % 5
            for r in range(4):
                A.e(f"v_add_f32 v{160+4*n+r}, v{160+4*n+r}, v{8+12*n+r}")
                A.e(f"v_add_f32 v{8+12*n+4+r}, v{8+12*n+4+r}, v{8+12*n+8+r}")
            for r in range(4):
                A.e(f"v_add_f32 v{160+4*n+r}, v{160+4*n+r}, v{8+12*n+4+r}")
            A.e(f"v_cvt_pk_bf16_f32 v{8+12*n}, v{160+4*n}, v{160+4*n+1}")
            A.e(f"v_cvt_pk_bf16_f32 v{8+12*n+1}, v{160+4*n+2}, v{160+4*n+3}")
            A.e(f"buffer_store_dwordx2 {v(8+12*n,2)}, v5, s[12:15], s{20+qt} offen offset:{32*i}")
        A.label(f"L_b_skipr{w}")
    A.label("L_b_done")
    A.e("s_endpgm")

def kd(name, vg, acc):
    return f""".amdhsa_kernel {name}
  .amdhsa_next_free_vgpr {vg}
  .amdhsa_next_free_sgpr 96
  .amdhsa_accum_offset {acc}
  .amdhsa_group_segment_fixed_size 0
  .amdhsa_kernarg_size 64
  .amdhsa_user_sgpr_count 2
  .amdhsa_user_sgpr_kernarg_segment_ptr 1
  .amdhsa_system_sgpr_workgroup_id_x 1
.end_amdhsa_kernel
"""

def main():
    A = Asm()
    kernel_a(A)
    kernel_b(A)
    head = f"""; MHA block with KV cache: attn_kernel (Q-proj + attention -> ws), oproj_kernel (O-proj). Generated by work/gen.py
; @launch kernel=attn_kernel grid=(512,1,1) block=(128,1,1) lds=81920
; @launch kernel=oproj_kernel grid=(256,1,1) block=(256,1,1) lds=163840
.amdgcn_target "amdgcn-amd-amdhsa--gfx950"
.text
.globl attn_kernel
.type attn_kernel,@function
.globl oproj_kernel
.type oproj_kernel,@function
"""
    tail = '.section .rodata,"a"\n.p2align 6\n' + kd("attn_kernel", 512, 256) + ".p2align 6\n" + kd("oproj_kernel", 512, 256)
    open(sys.argv[1], "w").write(head + "\n".join(A.lines) + "\n" + tail)

main()
```

```python
import sys, struct, math

NAME = "standalone__mha_block_cached__near_ridge"
OPT = dict(nt=1, thr_log2=24, prof=0, map=0, nox=0, wlin=0, nowd=0, nord=0, nofb=0, nokv=0, nobar=0, xlin=0, ntw=0, ntx=0, warm=1, ntwarm=0)
for a in sys.argv[2:]:
    k, v = a.split("=")
    OPT[k] = int(v)

def f32bits(x):
    return struct.unpack("<I", struct.pack("<f", x))[0]

class Asm:
    def __init__(self):
        self.lines = []
        self.vq = []
    def e(self, s):
        self.lines.append("  " + s)
    def label(self, s):
        self.lines.append(s + ":")
    def c(self, s):
        self.lines.append("  ; " + s)
    def vm(self, s, tag):
        self.e(s)
        self.vq.append(tag)
    def vmn(self, tags):
        last = -1
        for i, t in enumerate(self.vq):
            if t in tags:
                last = i
        if last < 0:
            return None
        n = len(self.vq) - 1 - last
        self.vq = self.vq[last + 1:]
        return min(n, 63)
    def wait(self, tags=(), lgkm=None, vm0=False):
        n = self.vmn(tags) if tags else None
        if vm0:
            n = 0
            self.vq = []
        s = "s_waitcnt"
        if n is not None:
            s += f" vmcnt({n})"
        if lgkm is not None:
            s += f" lgkmcnt({lgkm})"
        if s != "s_waitcnt":
            self.e(s)
    def weave(self, mf, fill):
        for i, m in enumerate(mf):
            self.e(m)
            for (s, tag) in fill.get(i, []):
                self.item(s, tag)
    def item(self, s, tag):
        if s == "WAIT":
            self.wait(tag)
        elif tag is None:
            self.e(s)
        else:
            self.vm(s, tag)

def v(i, n=1):
    return f"v{i}" if n == 1 else f"v[{i}:{i+n-1}]"
def a(i, n=1):
    return f"a{i}" if n == 1 else f"a[{i}:{i+n-1}]"
MF = "v_mfma_f32_16x16x32_bf16"

OWS = 0
WOT = 320 * 128 * 1024
WS_USED = WOT + 36 * 128 * 1024
if OPT["prof"]: WS_USED = 0x5000000
sPf = 78
OOB = 0x7F000000

vKd = 1; vVd = 5; vWd = 7; vXo = 11; vKa = 12; vVa = 16; vWa = 24; vOo = 28; vWoL = 29
vT = 30
vQ = 36; vX = 36; vAcc = 92
vKf = 116; vS = 180; vP = 196; vC = 216; vE = 236
aO = 0; aVf = 160; aWf = 160; aL = 224; aOne = 244
L_W = [0, 8192, 16384]
L_X = 24576
sXm = 47; sWarm = 49
vXr = 252
sM4 = 79; sQh = 80; sHs = 81; HB = 81920
L_V = [24576, 32768, 40960, 16384]
L_K0 = 49152
sX, sK, sV, sWQ, sWS, sWO = 8, 12, 16, 20, 24, 28
sW4 = 32; sU = 33; sKb = 34; sKn = 35; sWb = 36; sXq = 37; sOb = 42; sWoG = 43; sWoS = 45
sJob = 46; sScale = 48; sT0 = 50; sT1 = 51; sWn = 52; sFlag = 53; sU0 = 54; sWave = 55; sSlow = 56; sThr = 57
sT2 = 58; sT3 = 59
NT = " nt" if OPT["nt"] else ""
NTW = " nt" if OPT["ntw"] else ""

def mark(A, t0=30, srd=24, real=False, lvl=1):
    if not OPT["prof"]: return
    if not real and srd == 24 and OPT["prof"] != lvl: return
    A.e("s_memrealtime s[76:77]" if real else "s_memtime s[76:77]")
    A.e("s_waitcnt lgkmcnt(0)")
    A.e(f"v_mov_b32 v{t0}, s76")
    A.e(f"v_mov_b32 v{t0+1}, s77")
    A.e(f"v_mov_b32 v{t0+2}, 0")
    A.vm(f"buffer_store_dwordx2 v[{t0}:{t0+1}], v{t0+2}, s[{srd}:{srd+3}], s{sPf} offen", "PF")
    A.e(f"s_add_u32 s{sPf}, s{sPf}, 8")

def dma_kv(kind, jj, pieces=(0, 1, 2, 3)):
    base = sKb if jj < 16 else sKn
    j = jj % 16
    slot = (L_K0 + 8192 * (jj % 4)) if kind == "K" else L_V[jj % 4]
    out = [(f"s_add_u32 m0, s{sM4}, {slot}", None),
           (f"s_add_u32 s{sT0}, s{base}, {j*8192}", None)]
    for pp in pieces:
        vo = vKd + pp if kind == "K" else vVd + (pp & 1)
        r = sK if kind == "K" else sV
        if OPT["nokv"]: out.append(("s_nop 0", None)); continue
        out.append((f"buffer_load_dwordx4 v{vo}, s[{r}:{r+3}], s{sT0} offen offset:{pp*1024}{NT} lds", f"{kind}{jj}"))
    return out

def dma_w(t, nxt=False):
    base = sWn if nxt else sWb
    out = [(f"s_add_u32 m0, s{sM4}, {L_W[t%3]}", None),
           (f"s_add_u32 s{sT1}, s{base}, {(t*8192 if OPT['wlin']==3 else 0) if OPT['wlin'] else t*262144}", None)]
    for pp in range(4):
        if OPT["nowd"]: out.append(("s_nop 0", None)); continue
        out.append((f"buffer_load_dwordx4 v{vWd+pp}, s[{sWQ}:{sWQ+3}], s{sT1} offen offset:{pp*1024}{NTW} lds", f"W{t}"))
    return out

NTX = " nt" if OPT["ntx"] else ""
def xfrag(t, qt):
    o = 8*qt + 4*(t % 2)
    return v(36 + o, 4) if (t//2) % 2 == 0 else a(o, 4)
def ld_x(p, qt):
    po = 0 if OPT["xlin"] else 128*p
    return [(f"s_add_u32 m0, s{sXm}, {(p%2)*HB + qt*2048}", None), (f"s_add_u32 s{sT1}, s{sXq+qt}, {po}", None),
            (f"buffer_load_dwordx4 v{vXo}, s[{sX}:{sX+3}], s{sT1} offen{NTX} lds", f"X{p}")]
def rd_x(p):
    return [(f"ds_read_b128 {xfrag(2*p+ks, qt)}, v{vXr + 2*(p%2) + ks} offset:{qt*2048}", None) for ks in range(2) for qt in range(5)]

def rd_w(t):
    out = []
    if OPT["nord"]: return out
    for T in range(8):
        for hb in range(2):
            out.append((f"ds_read_b64_tr_b16 {a(aWf + 32*(t%2) + 4*T + 2*hb, 2)}, v{vWa + T//2} offset:{L_W[t%3] + 8*(T%2) + 1024*hb}", None))
    return out

def rd_k(j):
    return [(f"ds_read_b128 {v(vKf + 32*(j%2) + 16*aa + 4*t, 4)}, v{vKa+t} offset:{8192*(j%4) + 4096*aa}", None)
            for aa in range(2) for t in range(4)]

def rd_v(j):
    return [(f"ds_read_b64_tr_b16 {a(aVf + 32*(j%2) + 4*T + 2*hb, 2)}, v{vVa+T} offset:{L_V[j%4] + 4096*hb}", None)
            for T in range(8) for hb in range(2)]

def spread(fill, items, slots):
    for k, grp in enumerate(items):
        fill.setdefault(slots[k], []).extend(grp)

def emit_list(A, lst):
    for s, tag in lst:
        A.item(s, tag)

def qproj(A, cold):
    A.c("---- Q-proj " + ("cold" if cold else "warm"))
    if cold:
        for qt in range(5): emit_list(A, ld_x(0, qt))
        emit_list(A, dma_w(0))
        if OPT["warm"]:
            ntw = " nt" if OPT["ntwarm"] else ""
            for i in range(5):
                if i < 3: A.vm(f"buffer_load_dword v76, v{vE+2+i}, s[{sX}:{sX+3}], s{sWarm} offen{ntw}", "WU")
                A.e(f"s_add_u32 s{sT1}, s{sThr}, {i*1048576}")
                A.vm(f"buffer_load_dword v77, v{vE+5}, s[{sWQ}:{sWQ+3}], s{sT1} offen{ntw}", "WU")
        emit_list(A, dma_w(1))
        for qt in range(5): emit_list(A, ld_x(1, qt))
        emit_list(A, dma_w(2))
        for jj in range(4): emit_list(A, dma_kv("K", jj))
    ml = 3 if cold else 2
    mark(A, lvl=ml)
    A.wait(["W0", "X0"])
    A.e("s_barrier")
    emit_list(A, rd_w(0))
    emit_list(A, rd_x(0))
    for t in range(18):
        A.wait([f"W{t+1}"] + ([f"X{t//2+1}"] if t % 2 else []), lgkm=0)
        A.e("s_barrier")
        if t % 2 == 0: mark(A, lvl=ml)
        mf = []
        for T in range(8):
            for qt in range(5):
                f = (T//2)*5 + qt
                d = v(vAcc + 8*f + 4*(T%2), 4)
                mf.append(f"{MF} {d}, {a(aWf + 32*(t%2) + 4*T, 4)}, {xfrag(t, qt)}, {'0' if t == 0 else d}")
        fill = {}
        groups = []
        p = t//2 + 2
        if p <= 8:
            for qt in ((0, 1, 2) if t % 2 == 0 else (3, 4)): groups.append(ld_x(p, qt))
        if t + 3 <= 17:
            w = dma_w(t+3)
            groups += [w[0:3], [w[3]], [w[4]], [w[5]]]
        for vj in {16: (0, 1, 2), 17: (3,)}.get(t, ()):
            w = dma_kv("V", vj)
            groups += [w[0:3], [w[3]], [w[4]], [w[5]]]
        rds = [[r] for r in rd_w(t+1)] if t + 1 <= 17 else []
        if t % 2 == 1 and t//2 + 1 <= 8:
            xr = [[r] for r in rd_x(t//2 + 1)]
            spread(fill, xr, list(range(3, 33, 3)))
        spread(fill, rds, list(range(0, 32, 2)))
        spread(fill, groups, list(range(1, 40, 3)) if len(groups) > 7 else list(range(1, 36, 5)))
        A.weave(mf, fill)
    mark(A, lvl=ml)
    A.e("s_nop 7")
    for f in range(20):
        b = vAcc + 8*f
        for i in range(8):
            A.e(f"v_mul_f32 v{b+i}, s{sScale}, v{b+i}")
        for i in range(4):
            A.e(f"v_cvt_pk_bf16_f32 v{vQ+4*f+i}, v{b+2*i}, v{b+2*i+1}")
    mark(A, lvl=ml)

def qk_mf(j, qt, sb, czero=False):
    mf = []
    for t in range(4):
        for aa in range(2):
            d = v(vS + 8*sb + 4*aa, 4)
            c = d if t > 0 else ("0" if czero else v(vC + 4*qt, 4))
            mf.append(f"{MF} {d}, {v(vKf + 32*(j%2) + 16*aa + 4*t, 4)}, {v(vQ + 4*(t*5+qt), 4)}, {c}")
    return mf

def pv_mf(j, qt):
    mf = []
    for T in range(8):
        d = a(aO + 32*qt + 4*T, 4)
        mf.append(f"{MF} {d}, {a(aVf + 32*(j%2) + 4*T, 4)}, {v(vP + 4*qt, 4)}, {'0' if j == 0 else d}")
    d = a(aL + 4*qt, 4)
    mf.append(f"{MF} {d}, {a(aOne, 4)}, {v(vP + 4*qt, 4)}, {'0' if j == 0 else d}")
    return mf

def softmax_ops(sb, qt):
    s = vS + 8*sb
    ex = [[(f"v_exp_f32 v{s+i}, v{s+i}", None)] for i in range(8)]
    cv = [(f"v_cvt_pk_bf16_f32 v{vP+4*qt+i}, v{s+2*i}, v{s+2*i+1}", None) for i in range(4)]
    return ex, cv

def lane_max(A, m, t):
    A.e(f"v_mov_b32 v{t}, v{m}")
    A.e("s_nop 1")
    A.e(f"v_permlane32_swap_b32 v{t}, v{m}")
    A.e("s_nop 1")
    A.e(f"v_max_f32 v{m}, v{t}, v{m}")
    A.e(f"v_mov_b32 v{t}, v{m}")
    A.e("s_nop 1")
    A.e(f"v_permlane16_swap_b32 v{t}, v{m}")
    A.e("s_nop 1")
    A.e(f"v_max_f32 v{m}, v{t}, v{m}")

def maxpass(A):
    A.c("---- max pass (fallback)")
    for qt in range(5):
        A.e(f"v_mov_b32 v{vE+qt}, 0xff800000")
    A.e(f"s_mov_b32 s{sT2}, s{sKb}")
    A.e(f"s_add_u32 s{sT3}, s{sKb}, 131072")
    A.label("L_maxloop")
    A.e("s_barrier")
    A.e(f"s_add_u32 m0, s{sM4}, {L_W[0]}")
    A.e("s_nop 0")
    for pp in range(4):
        A.e(f"buffer_load_dwordx4 v{vKd+pp}, s[{sK}:{sK+3}], s{sT2} offen offset:{pp*1024} lds")
    A.e("s_waitcnt vmcnt(0)")
    A.e("s_barrier")
    for t in range(4):
        A.e(f"v_subrev_u32 v{vT+t}, {L_K0}, v{vKa+t}")
    for aa in range(2):
        for t in range(4):
            A.e(f"ds_read_b128 {v(vKf + 16*aa + 4*t, 4)}, v{vT+t} offset:{L_W[0] + 4096*aa}")
    A.e("s_waitcnt lgkmcnt(0)")
    for qt in range(5):
        for m in qk_mf(0, qt, 0, czero=True): A.e(m)
        A.e("s_nop 7")
        s = vS
        for i in range(4):
            A.e(f"v_max3_f32 v{vE+qt}, v{s+2*i}, v{s+2*i+1}, v{vE+qt}")
        A.e("s_nop 3")
    A.e(f"s_add_u32 s{sT2}, s{sT2}, 8192")
    A.e(f"s_cmp_lt_u32 s{sT2}, s{sT3}")
    A.e("s_cbranch_scc1 L_maxloop")
    for qt in range(5):
        lane_max(A, vE+qt, vT)
        for i in range(4):
            A.e(f"v_sub_f32 v{vC+4*qt+i}, 0, v{vE+qt}")
    A.e("s_barrier")

def attention(A):
    A.c("---- attention prologue")
    A.vq = [f"V{j}" for j in range(4) for _ in range(4)]
    mark(A)
    A.e(f"s_cmp_eq_u32 s{sSlow}, 0")
    A.e("s_cbranch_scc1 L_nomax")
    maxpass(A)
    A.label("L_nomax")
    emit_list(A, rd_k(0))
    emit_list(A, rd_k(1))
    A.wait(lgkm=8)
    for m in qk_mf(0, 0, 1, czero=True): A.e(m)
    for qt in range(5):
        sb = (qt + 1) % 2
        s = vS + 8*sb
        if qt < 4:
            for m in qk_mf(0, qt+1, qt % 2, czero=True): A.e(m)
        else:
            A.wait(["V0"])
            A.e("s_barrier")
            emit_list(A, rd_v(0))
        m = vT; t = vT + 1
        A.e(f"v_max3_f32 v{m}, v{s}, v{s+1}, v{s+2}")
        A.e(f"v_max3_f32 v{m}, v{s+3}, v{s+4}, v{m}")
        A.e(f"v_max3_f32 v{m}, v{s+5}, v{s+6}, v{m}")
        A.e(f"v_max_f32 v{m}, v{s+7}, v{m}")
        lane_max(A, m, t)
        A.e(f"v_sub_f32 v{m}, 0, v{m}")
        for i in range(4):
            A.e(f"v_cndmask_b32 v{vC+4*qt+i}, v{m}, v{vC+4*qt+i}, s[60:61]")
        for i in range(8):
            A.e(f"v_add_f32 v{s+i}, v{s+i}, v{vC+4*qt}")
        if qt < 4:
            ex, cv = softmax_ops(sb, qt)
            for g in ex: emit_list(A, g)
            A.e("s_nop 0")
            emit_list(A, cv)
    mark(A)
    for j in range(16):
        A.c(f"---- iter {j}")
        A.wait([f"K{j+2}", f"V{j+1}"] if j < 15 else [], lgkm=0)
        A.e("s_barrier")
        vmg = []
        def addkv(kind, jj):
            kv = dma_kv(kind, jj)
            vmg.extend([kv[0:3], [kv[3]], [kv[4]], [kv[5]]])
        if j >= 14:
            for qt in range(5): vmg.append(ld_x(j - 14, qt))
        if j == 0: addkv("K", 4)
        if j + 5 <= 19: addkv("K", j+5)
        if j + 4 <= 15: addkv("V", j+4)
        wt = {12: 0, 13: 1, 15: 2}.get(j)
        if wt is not None:
            w = dma_w(wt, nxt=True)
            vmg.extend([w[0:3], [w[3]], [w[4]], [w[5]]])
        if j == 14:
            for i in range(3):
                for e8 in range(8):
                    vmg.append([(f"buffer_load_ushort v{vKf + 8*i + e8}, v{vWoL}, s[{sWO}:{sWO+3}], s{sWoG + e8//4} offen offset:{(e8%4)*1152 + 32*i}", "G")])

        rds = []
        if j + 2 <= 15: rds += [[r] for r in rd_k(j+2)]
        if j + 1 <= 15: rds += [[r] for r in rd_v(j+1)]
        others = []
        i1 = i2 = 0
        while i1 < len(vmg) or i2 < len(rds):
            if i2 < len(rds): others.append(rds[i2]); i2 += 1
            if i1 < len(vmg): others.append(vmg[i1]); i1 += 1
        for qt in range(5):
            n = 5*j + qt
            mf = (qk_mf(j+1, qt, n % 2) if j < 15 else []) + pv_mf(j, qt)
            fill = {}
            nm = len(mf)
            do_sm = (j < 15) or qt == 0
            free = list(range(nm))
            if do_sm:
                ex, cv = softmax_ops((n-1) % 2, (qt - 1) % 5)
                if nm == 17:
                    exs = [0, 2, 4, 6, 8, 10, 12, 13]; cvs = [14, 15]
                else:
                    exs = [0, 1, 2, 3, 4, 5, 6, 7]; cvs = [8, 8]
                spread(fill, ex, exs)
                if cvs[0] == 8: fill.setdefault(8, [])
                fill.setdefault(cvs[0], []).extend(cv[0:2])
                fill.setdefault(cvs[1], []).extend(cv[2:4])
                free = [s for s in range(nm) if s not in exs and s not in cvs]
                if not free: free = [8]
            rem = 5 - qt
            k = -(-len(others) // rem) if qt < 4 else len(others)
            k = max(k, min(len(others), len(free)))
            take, others = others[:k], others[k:]
            for idx, g in enumerate(take):
                fill.setdefault(free[idx % len(free)] if len(take) <= len(free) else free[idx * len(free) // len(take)], []).extend(g)
            A.weave(mf, fill)
    A.c("---- epilogue")
    mark(A)
    A.e("s_nop 7")
    A.e("s_mov_b64 s[62:63], 0")
    for qt in range(5):
        A.e(f"v_accvgpr_read_b32 v{vC+qt}, a{aL+4*qt}")
    for qt in range(5):
        A.e(f"v_cmp_nlt_f32 vcc, v{vC+qt}, v{vT+5}")
        A.e(f"v_rcp_f32 v{vC+qt}, v{vC+qt}")
        A.e("s_or_b64 s[62:63], s[62:63], vcc")
    k = 0
    for qt in range(5):
        for jp in range(4):
            tb = [vS, vS+8, vP, vP+8][k % 4]
            ob = vE + 4*(k % 4)
            k += 1
            for i in range(8):
                A.e(f"v_accvgpr_read_b32 v{tb+i}, a{aO + 32*qt + 8*jp + i}")
            for i in range(8):
                A.e(f"v_mul_f32 v{tb+i}, v{tb+i}, v{vC+qt}")
            for i in range(4):
                A.e(f"v_cvt_pk_bf16_f32 v{ob+i}, v{tb+2*i}, v{tb+2*i+1}")
            if jp == 0:
                A.e(f"s_add_u32 s{sT0}, s{sOb}, {qt*131072}")
            A.vm(f"buffer_store_dwordx4 {v(ob,4)}, v{vOo}, s[{sWS}:{sWS+3}], s{sT0} offen offset:{jp*1024}", "ST")
    A.wait(["G"])
    for i in range(3):
        for p in range(4):
            A.e(f"v_lshl_or_b32 v{vKf+32+4*i+p}, v{vKf+8*i+2*p+1}, 16, v{vKf+8*i+2*p}")
        A.e(f"s_add_u32 s{sT0}, s{sWoS}, {i*131072}")
        A.vm(f"buffer_store_dwordx4 {v(vKf+32+4*i,4)}, v{vOo}, s[{sWS}:{sWS+3}], s{sT0} offen", "ST")
    mark(A)

def unit_setup(A):
    A.e(f"s_lshl_b32 s{sKb}, s{sU}, 17")
    A.e(f"s_xor_b32 s{sKn}, s{sKb}, 262144")
    A.e(f"s_and_b32 s{sT0}, s{sU}, 31")
    A.e(f"s_lshl_b32 s{sWb}, s{sT0}, 8")
    A.e(f"s_xor_b32 s{sWn}, s{sWb}, 512")
    if OPT["wlin"] == 3:
        A.e(f"s_mul_i32 s{sWb}, s{sWb}, 576")
        A.e(f"s_mul_i32 s{sWn}, s{sWn}, 576")
    A.e(f"s_cmp_eq_u32 s{sJob}, 0")
    A.e(f"s_cselect_b32 s{sKn}, s{sKn}, {OOB}")
    A.e(f"s_cselect_b32 s{sWn}, s{sWn}, {OOB}")
    A.e(f"s_lshr_b32 s{sT1}, s{sU}, 5")
    A.e(f"s_mul_i32 s{sT1}, s{sT1}, 10")
    A.e(f"s_mul_i32 s{sT2}, s{sQh}, 5")
    A.e(f"s_add_u32 s{sT1}, s{sT1}, s{sT2}")
    A.e(f"s_lshl_b32 s{sT1}, s{sT1}, 17")
    A.e(f"s_lshl_b32 s{sT0}, s{sT0}, 12")
    A.e(f"s_add_u32 s{sOb}, s{sT1}, s{sT0}")
    A.e(f"s_lshl_b32 s{sT0}, s{sU}, 1")
    A.e(f"s_add_u32 s{sT0}, s{sT0}, s{sQh}")
    A.e(f"s_lshr_b32 s{sT1}, s{sT0}, 4")
    A.e(f"s_and_b32 s{sT0}, s{sT0}, 15")
    A.e(f"s_mul_i32 s{sT2}, s{sT1}, {32*1152}")
    A.e(f"s_mul_i32 s{sT3}, s{sT0}, 96")
    A.e(f"s_add_u32 s{sWoG}, s{sT2}, s{sT3}")
    A.e(f"s_add_u32 s{sWoG+1}, s{sWoG}, {16*1152}")
    A.e(f"s_mul_i32 s{sT2}, s{sT0}, {3*131072}")
    A.e(f"s_lshl_b32 s{sT3}, s{sT1}, 10")
    A.e(f"s_add_u32 s{sT2}, s{sT2}, s{sT3}")
    A.e(f"s_add_u32 s{sWoS}, s{sT2}, {WOT}")
    A.e(f"s_cmp_lt_u32 s{sT0}, 12")
    A.e(f"s_cselect_b32 s{sWoG}, s{sWoG}, {OOB}")
    A.e(f"s_cselect_b32 s{sWoG+1}, s{sWoG+1}, {OOB}")
    A.e(f"s_cselect_b32 s{sWoS}, s{sWoS}, {OOB}")
    A.e(f"s_cmp_lg_u32 s{sSlow}, 0")
    A.e("s_cselect_b64 s[60:61], -1, 0")

def mk_srd(A, s, p, nbytes):
    A.e(f"s_mov_b32 s{s}, s{p}")
    A.e(f"s_and_b32 s{s+1}, s{p+1}, 0xffff")
    A.e(f"s_mov_b32 s{s+2}, {nbytes}")
    A.e(f"s_mov_b32 s{s+3}, 0x00020000")

def kernel_a(A):
    A.lines.append(".p2align 8")
    A.label("attn_kernel")
    A.e("s_cmp_ge_u32 s2, 256")
    A.e("s_cbranch_scc1 L_a_done")
    A.e("s_load_dwordx8 s[64:71], s[0:1], 0")
    A.e("s_load_dwordx2 s[72:73], s[0:1], 32")
    A.e("s_load_dwordx2 s[74:75], s[0:1], 56")
    L, g, q, r, c = vT, vT+1, vT+2, vT+3, vT+4
    A.e(f"v_lshrrev_b32 v{g}, 6, v0")
    A.e(f"v_and_b32 v{L}, 63, v0")
    A.e("s_nop 0")
    A.e(f"v_readfirstlane_b32 s{sWave}, v{g}")
    A.e(f"v_lshrrev_b32 v{g}, 4, v{L}")
    A.e(f"v_and_b32 v{q}, 15, v{L}")
    A.e(f"v_lshrrev_b32 v{r}, 2, v{q}")
    A.e(f"v_and_b32 v{c}, 3, v{L}")
    A.e(f"s_and_b32 s{sQh}, s{sWave}, 1")
    A.e(f"s_lshr_b32 s{sHs}, s{sWave}, 1")
    A.e(f"s_lshl_b32 s{sW4}, s{sQh}, 12")
    A.e(f"s_mul_i32 s{sT3}, s{sHs}, {HB}")
    A.e(f"s_add_u32 s{sM4}, s{sW4}, s{sT3}")
    t0, t1 = vE, vE+1
    for pp in range(4):
        A.e(f"v_add_u32 v{t0}, {4*pp}, v{g}")
        A.e(f"v_xor_b32 v{t0}, v{t0}, v{q}")
        A.e(f"v_lshlrev_b32 v{t0}, 4, v{t0}")
        A.e(f"v_lshl_add_u32 v{t0}, v{g}, 8, v{t0}")
        A.e(f"v_add_u32 v{vKd+pp}, s{sW4}, v{t0}")
    for p1 in range(2):
        A.e(f"v_add_u32 v{t0}, {4*p1}, v{g}")
        A.e(f"v_lshlrev_b32 v{t0}, 1, v{t0}")
        A.e(f"v_xor_b32 v{t0}, v{t0}, v{q}")
        A.e(f"v_lshlrev_b32 v{t0}, 4, v{t0}")
        A.e(f"v_lshl_add_u32 v{t0}, v{g}, 8, v{t0}")
        A.e(f"v_add_u32 v{vVd+p1}, s{sW4}, v{t0}")
    A.e(f"s_lshl_b32 s{sT0}, s{sQh}, 17")
    for pp in range(4):
        A.e(f"v_lshlrev_b32 v{t0}, 2, v{g}")
        A.e(f"v_xor_b32 v{t0}, v{t0}, v{q}")
        A.e(f"v_lshlrev_b32 v{t0}, 4, v{t0}")
        A.e(f"v_lshl_add_u32 v{t0}, v{g}, 13, v{t0}")
        A.e(f"v_add_u32 v{t0}, {pp*32768 - pp*1024}, v{t0}")
        A.e(f"v_add_u32 v{vWd+pp}, s{sT0}, v{t0}")
        if OPT["wlin"] == 2: A.e(f"v_lshlrev_b32 v{vWd+pp}, 4, v{L}")
        if OPT["wlin"] == 3:
            A.e(f"v_lshlrev_b32 v{vWd+pp}, 4, v{L}")
            A.e(f"v_add_u32 v{vWd+pp}, s{sW4}, v{vWd+pp}")
    A.e(f"s_mul_i32 s{sT0}, s{sQh}, {80*1152}")
    A.e(f"s_mul_i32 s{sT1}, s{sHs}, {8*1152}")
    A.e(f"s_add_u32 s{sT0}, s{sT0}, s{sT1}")
    A.e(f"v_lshrrev_b32 v{t1}, 3, v{L}")
    A.e(f"v_mul_u32_u24 v{t0}, 1152, v{t1}")
    A.e(f"v_and_b32 v{vXo}, 7, v{L}")
    A.e(f"v_xor_b32 v{vXo}, v{vXo}, v{t1}")
    A.e(f"v_lshl_add_u32 v{t0}, v{vXo}, 4, v{t0}")
    A.e(f"v_add_u32 v{vXo}, s{sT0}, v{t0}")
    A.e(f"s_mul_i32 s{sXm}, s{sQh}, 10240")
    A.e(f"s_add_u32 s{sXm}, s{sXm}, {L_X}")
    A.e(f"v_and_b32 v{t0}, 7, v{q}")
    A.e(f"v_xor_b32 v{t0}, v{t0}, v{g}")
    A.e(f"v_lshlrev_b32 v{t0}, 4, v{t0}")
    A.e(f"v_lshl_add_u32 v{t0}, v{q}, 7, v{t0}")
    A.e(f"v_add_u32 v{vXr}, s{sXm}, v{t0}")
    A.e(f"v_xor_b32 v{vXr+1}, 64, v{vXr}")
    A.e(f"v_add_u32 v{vXr+2}, {HB}, v{vXr}")
    A.e(f"v_add_u32 v{vXr+3}, {HB}, v{vXr+1}")
    A.e(f"s_lshl_b32 s{sT1}, s{sHs}, 10")
    A.e(f"s_add_u32 s{sXm}, s{sXm}, s{sT1}")
    A.e(f"s_lshr_b32 s{sT0}, s2, 3")
    A.e(f"s_lshl_b32 s{sT0}, s{sT0}, 2")
    A.e(f"s_add_u32 s{sT0}, s{sT0}, s{sWave}")
    A.e(f"s_mul_i32 s{sWarm}, s{sT0}, 11520")
    A.e(f"s_bfe_u32 s{sT1}, s2, 0x20001")
    A.e(f"s_mul_i32 s{sT1}, s{sT1}, {8*184320}")
    A.e(f"s_add_u32 s{sWarm}, s{sWarm}, s{sT1}")
    A.e(f"s_lshr_b32 s{sThr}, s{sT0}, 1")
    A.e(f"s_lshl_b32 s{sThr}, s{sThr}, 13")
    A.e(f"s_and_b32 s{sT1}, s2, 1")
    A.e(f"s_lshl_b32 s{sT1}, s{sT1}, 12")
    A.e(f"s_add_u32 s{sThr}, s{sThr}, s{sT1}")
    A.e(f"s_lshl_b32 s{sT1}, s{sQh}, 11")
    A.e(f"s_add_u32 s{sThr}, s{sThr}, s{sT1}")
    for t in range(4):
        A.e(f"v_add_u32 v{t0}, {4*t}, v{g}")
        A.e(f"v_xor_b32 v{t0}, v{t0}, v{q}")
        A.e(f"v_lshlrev_b32 v{t0}, 4, v{t0}")
        A.e(f"v_lshl_add_u32 v{t0}, v{q}, 8, v{t0}")
        A.e(f"v_add_u32 v{t0}, {L_K0}, v{t0}")
        A.e(f"v_add_u32 v{vKa+t}, s{sT3}, v{t0}")
    A.e(f"v_and_b32 v{t1}, 1, v{g}")
    A.e(f"v_lshl_add_u32 v{t1}, v{t1}, 2, v{r}")
    A.e(f"v_lshlrev_b32 v{t1}, 1, v{t1}")
    for T in range(8):
        A.e(f"v_lshrrev_b32 v{t0}, 1, v{c}")
        A.e(f"v_add_u32 v{t0}, {2*T}, v{t0}")
        A.e(f"v_xor_b32 v{t0}, v{t0}, v{t1}")
        A.e(f"v_lshlrev_b32 v{t0}, 4, v{t0}")
        A.e(f"v_lshl_add_u32 v{vVa+T}, v{g}, 2, v{r}")
        A.e(f"v_lshl_add_u32 v{t0}, v{vVa+T}, 8, v{t0}")
        A.e(f"v_and_b32 v{vVa+T}, 1, v{c}")
        A.e(f"v_lshl_add_u32 v{vVa+T}, v{vVa+T}, 3, v{t0}")
        A.e(f"v_add_u32 v{vVa+T}, s{sT3}, v{vVa+T}")
    for tt in range(4):
        A.e(f"v_xor_b32 v{t0}, {tt}, v{r}")
        A.e(f"v_lshl_add_u32 v{t0}, v{t0}, 2, v{c}")
        A.e(f"v_lshlrev_b32 v{t0}, 4, v{t0}")
        A.e(f"v_lshl_add_u32 v{t1}, v{g}, 3, v{r}")
        A.e(f"v_lshl_add_u32 v{vWa+tt}, v{t1}, 8, v{t0}")
        A.e(f"v_add_u32 v{vWa+tt}, s{sT3}, v{vWa+tt}")
    A.e(f"v_lshlrev_b32 v{vOo}, 4, v{L}")
    A.e(f"v_mul_u32_u24 v{t0}, {4*1152}, v{g}")
    A.e(f"v_lshl_add_u32 v{vWoL}, v{q}, 1, v{t0}")
    A.e(f"v_mov_b32 v{t0}, 0x3f803f80")
    for i in range(4):
        A.e(f"v_accvgpr_write_b32 a{aOne+i}, v{t0}")
    A.e(f"v_mov_b32 v{vT+5}, {f32bits(2.0**OPT['thr_log2'])}")
    A.e(f"s_mov_b32 s{sScale}, {f32bits(math.log2(math.e)/math.sqrt(128.0))}")
    A.e(f"s_bfe_u32 s{sT2}, s2, 0x20001")
    A.e(f"s_lshl_b32 s{sT2}, s{sT2}, 3")
    A.e(f"s_bfe_u32 s{sT3}, s2, 0x30003")
    A.e(f"s_add_u32 s{sT2}, s{sT2}, s{sT3}")
    A.e(f"s_and_b32 s{sT0}, s2, 1")
    A.e(f"s_lshl_b32 s{sT0}, s{sT0}, 2")
    A.e(f"s_lshr_b32 s{sT1}, s2, 6")
    A.e(f"s_add_u32 s{sT0}, s{sT0}, s{sT1}")
    A.e(f"s_lshl_b32 s{sU0}, s{sT2}, 5")
    A.e(f"s_lshl_b32 s{sT0}, s{sT0}, 2")
    A.e(f"s_add_u32 s{sU0}, s{sU0}, s{sT0}")
    A.e(f"s_add_u32 s{sU0}, s{sU0}, s{sHs}")
    A.e(f"s_mul_i32 s{sXq}, s{sT2}, 184320")
    for qt in range(1, 5):
        A.e(f"s_add_u32 s{sXq+qt}, s{sXq}, {qt*18432}")
    A.e(f"s_mov_b32 s{sU}, s{sU0}")
    A.e(f"s_mov_b32 s{sJob}, 0")
    A.e(f"s_mov_b32 s{sSlow}, 0")
    A.e(f"s_mov_b32 s{sFlag}, 0")
    A.e("s_waitcnt lgkmcnt(0)")
    mk_srd(A, sX, 64, 32*160*576*2)
    mk_srd(A, sK, 66, 134217728)
    mk_srd(A, sV, 68, 134217728)
    mk_srd(A, sWQ, 70, 576*4096*2)
    mk_srd(A, sWO, 72, 576*4096*2)
    mk_srd(A, sWS, 74, WS_USED)
    A.e(f"s_lshl_b32 s{sPf}, s2, 2")
    A.e(f"s_add_u32 s{sPf}, s{sPf}, s{sWave}")
    A.e(f"s_lshl_b32 s{sPf}, s{sPf}, 7")
    A.e(f"s_add_u32 s{sPf}, s{sPf}, 0x4000000")
    mark(A, real=True)
    mark(A)
    A.label("L_cold")
    unit_setup(A)
    A.e(f"v_lshrrev_b32 v{vE}, 4, v{vOo}")
    for i in range(3):
        A.e(f"v_add_u32 v{vE+1}, {64*i}, v{vE}")
        A.e(f"v_mul_u32_u24 v{vE+5}, 205, v{vE+1}")
        A.e(f"v_lshrrev_b32 v{vE+5}, 11, v{vE+5}")
        A.e(f"v_mul_u32_u24 v{vE+6}, 10, v{vE+5}")
        A.e(f"v_sub_u32 v{vE+1}, v{vE+1}, v{vE+6}")
        A.e(f"v_mul_u32_u24 v{vE+1}, 1152, v{vE+1}")
        A.e(f"v_lshl_add_u32 v{vE+2+i}, v{vE+5}, 6, v{vE+1}")
    A.e(f"v_and_b32 v{vE+1}, 31, v{vE}")
    A.e(f"v_lshrrev_b32 v{vE+5}, 5, v{vE}")
    A.e(f"v_lshlrev_b32 v{vE+5}, 19, v{vE+5}")
    A.e(f"v_lshl_add_u32 v{vE+5}, v{vE+1}, 6, v{vE+5}")
    A.vq = []
    qproj(A, True)
    A.e("s_branch L_att")
    B = Asm()
    attention(B)
    tailq = list(B.vq)
    A.label("L_warm")
    unit_setup(A)
    A.vq = tailq
    qproj(A, False)
    A.label("L_att")
    A.lines += B.lines
    A.e("s_cmp_lg_u64 s[62:63], 0")
    A.e(f"s_cselect_b32 s{sT0}, 1, 0")
    A.e(f"s_and_b32 s{sT1}, s{sJob}, 1")
    A.e(f"s_lshl_b32 s{sT0}, s{sT0}, s{sT1}")
    A.e(f"s_or_b32 s{sFlag}, s{sFlag}, s{sT0}")
    A.e(f"s_add_u32 s{sJob}, s{sJob}, 1")
    A.e(f"s_cmp_eq_u32 s{sJob}, 1")
    A.e("s_cbranch_scc0 L_notwarm")
    A.e(f"s_xor_b32 s{sU}, s{sU0}, 2")
    A.e("s_branch L_warm")
    A.label("L_notwarm")
    A.e(f"s_cmp_eq_u32 s{sJob}, 2")
    A.e("s_cbranch_scc0 L_noexch")
    A.e("s_waitcnt vmcnt(0) lgkmcnt(0)")
    A.e("s_barrier")
    A.e(f"v_mov_b32 v{vT}, s{sWave}")
    A.e(f"v_lshlrev_b32 v{vT}, 2, v{vT}")
    A.e(f"v_mov_b32 v{vT+1}, s{sFlag}")
    A.e(f"ds_write_b32 v{vT}, v{vT+1}")
    A.e("s_waitcnt lgkmcnt(0)")
    A.e("s_barrier")
    A.e(f"v_mov_b32 v{vT}, 0")
    A.e(f"ds_read_b128 v[{vE}:{vE+3}], v{vT}")
    A.e("s_waitcnt lgkmcnt(0)")
    A.e(f"v_or3_b32 v{vT+2}, v{vE}, v{vE+1}, v{vE+2}")
    A.e(f"v_or_b32 v{vT+2}, v{vT+2}, v{vE+3}")
    A.e("s_nop 0")
    A.e(f"v_readfirstlane_b32 s{sSlow}, v{vT+2}")
    A.e("s_nop 3")
    A.e("s_barrier")
    mark(A)
    mark(A, real=True)
    A.label("L_noexch")
    A.e(f"s_and_b32 s{sT0}, s{sSlow}, {0 if OPT['nofb'] else 3}")
    A.e(f"s_cmp_eq_u32 s{sT0}, 0")
    A.e("s_cbranch_scc1 L_a_done")
    A.e(f"s_and_b32 s{sT1}, s{sSlow}, 1")
    A.e(f"s_xor_b32 s{sT1}, s{sT1}, 1")
    A.e(f"s_lshl_b32 s{sT2}, s{sT1}, 1")
    A.e(f"s_xor_b32 s{sU}, s{sU0}, s{sT2}")
    A.e(f"s_add_u32 s{sT1}, s{sT1}, 1")
    A.e(f"s_andn2_b32 s{sSlow}, s{sSlow}, s{sT1}")
    A.e(f"s_or_b32 s{sSlow}, s{sSlow}, 4")
    A.e("s_waitcnt vmcnt(0) lgkmcnt(0)")
    A.e("s_barrier")
    A.e("s_branch L_cold")
    A.label("L_a_done")
    A.e("s_endpgm")

def kernel_b(A):
    ST = 5
    A.lines.append(".p2align 8")
    A.label("oproj_kernel")
    A.e("s_cmp_ge_u32 s2, 256")
    A.e("s_cbranch_scc1 L_b_done")
    A.e("s_load_dwordx2 s[4:5], s[0:1], 40")
    A.e("s_load_dwordx2 s[6:7], s[0:1], 56")
    A.e("v_lshrrev_b32 v1, 6, v0")
    A.e("v_and_b32 v2, 63, v0")
    A.e("s_nop 0")
    A.e("v_readfirstlane_b32 s3, v1")
    A.e("v_lshlrev_b32 v3, 4, v2")
    A.e("s_and_b32 s16, s2, 7")
    A.e("s_lshl_b32 s16, s16, 3")
    A.e("s_lshr_b32 s17, s2, 5")
    A.e("s_add_u32 s16, s16, s17")
    A.e("s_lshr_b32 s17, s2, 3")
    A.e("s_and_b32 s17, s17, 3")
    A.e("s_lshl_b32 s18, s3, 15")
    A.e(f"s_mul_i32 s20, s16, {5*131072}")
    A.e("s_add_u32 s20, s20, s18")
    for qt in range(1, 5):
        A.e(f"s_add_u32 s{20+qt}, s20, {qt*131072}")
    A.e(f"s_mul_i32 s25, s17, {9*131072}")
    A.e("s_add_u32 s25, s25, s18")
    A.e(f"s_add_u32 s25, s25, {WOT}")
    for i in range(1, 9):
        A.e(f"s_add_u32 s{25+i}, s25, {i*131072}")
    A.e("s_waitcnt lgkmcnt(0)")
    mk_srd(A, 8, 6, WS_USED)
    mk_srd(A, 12, 4, 32*160*576*2)
    def sreg(st, i):
        return (v(8 + 56*st + 4*i, 4) if st < 4 else a(180 + 4*i, 4))
    A.e("v_add_u32 v4, 4096, v3")
    A.e("v_add_u32 v5, 4096, v4")
    A.e("v_add_u32 v6, 4096, v5")
    A.e("v_add_u32 v7, 4096, v6")
    A.e("v_add_u32 v232, 4096, v7")
    A.e("v_add_u32 v233, 4096, v232")
    A.e("v_add_u32 v234, 4096, v233")
    vo = [3, 4, 5, 6, 7, 232, 233, 234]
    def loads(s):
        st = s % ST
        out = []
        order = [0, 5, 1, 2, 3, 4, 6, 7, 8, 9, 10, 11, 12, 13]
        for i in order:
            out.append((f"buffer_load_dwordx4 {sreg(st, i)}, v{vo[s//4]}, s[8:11], s{20+i} offen offset:{(s%4)*1024}", f"L{s}"))
        return out
    A.vq = []
    A.e(f"s_lshl_b32 s{sPf}, s2, 2")
    A.e(f"s_add_u32 s{sPf}, s{sPf}, s3")
    A.e(f"s_lshl_b32 s{sPf}, s{sPf}, 7")
    A.e(f"s_add_u32 s{sPf}, s{sPf}, 0x4100000")
    mark(A, 240, 8, real=True)
    mark(A, 240, 8)
    for s in range(ST - 1):
        emit_list(A, loads(s))
    for s in range(32):
        A.wait([f"L{s}"])
        if s == 0: mark(A, 240, 8)
        mf = []
        for i in range(9):
            for qt in range(5):
                d = a(4*(i*5+qt), 4)
                mf.append(f"{MF} {d}, {sreg(s%ST, 5+i)}, {sreg(s%ST, qt)}, {'0' if s == 0 else d}")
        fill = {}
        if s + ST - 1 < 32:
            spread(fill, [[x] for x in loads(s + ST - 1)], list(range(1, 45, 3)))
        A.weave(mf, fill)
    A.e("s_nop 7")
    mark(A, 240, 8)
    for w in range(4):
        A.e(f"s_cmp_eq_u32 s3, {w}")
        A.e(f"s_cbranch_scc1 L_b_skipw{w}")
        A.e(f"s_cmp_gt_u32 s3, {w}")
        A.e(f"s_cselect_b32 s18, 1, 0")
        A.e(f"s_sub_u32 s18, s3, s18")
        A.e(f"s_mul_i32 s18, s18, 12288")
        A.e(f"s_add_u32 s18, s18, {w*36864}")
        A.e("v_add_u32 v4, s18, v3")
        for n, ti in enumerate([ti for ti in range(45) if ti % 4 == w]):
            A.e(f"ds_write_b128 v4, {a(4*ti,4)} offset:{n*1024}")
        A.label(f"L_b_skipw{w}")
    A.e("s_waitcnt lgkmcnt(0)")
    A.e("s_barrier")
    A.e("v_and_b32 v5, 15, v2")
    A.e("v_mul_u32_u24 v5, 1152, v5")
    A.e("v_lshrrev_b32 v6, 4, v2")
    A.e("v_lshl_add_u32 v5, v6, 3, v5")
    A.e(f"s_mul_i32 s18, s16, {80*1152}")
    A.e("s_mul_i32 s19, s17, 288")
    A.e("s_add_u32 s18, s18, s19")
    for qt in range(5):
        A.e(f"s_add_u32 s{20+qt}, s18, {qt*16*1152}")
    A.e("s_mul_i32 s18, s3, 36864")
    A.e("v_add_u32 v232, s18, v3")
    for w in range(4):
        A.e(f"s_cmp_lg_u32 s3, {w}")
        A.e(f"s_cbranch_scc1 L_b_skipr{w}")
        tis = [ti for ti in range(45) if ti % 4 == w]
        srcs = [x for x in range(4) if x != w]
        for n, ti in enumerate(tis):
            for k, sw in enumerate(srcs):
                A.e(f"ds_read_b128 {v(8 + 12*n + 4*k, 4)}, v232 offset:{(k*12+n)*1024}")
        for n, ti in enumerate(tis):
            for r in range(4):
                A.e(f"v_accvgpr_read_b32 v{160+4*n+r}, a{4*ti+r}")
        A.e("s_waitcnt lgkmcnt(0)")
        for n, ti in enumerate(tis):
            i, qt = ti // 5, ti % 5
            for r in range(4):
                A.e(f"v_add_f32 v{160+4*n+r}, v{160+4*n+r}, v{8+12*n+r}")
                A.e(f"v_add_f32 v{8+12*n+4+r}, v{8+12*n+4+r}, v{8+12*n+8+r}")
            for r in range(4):
                A.e(f"v_add_f32 v{160+4*n+r}, v{160+4*n+r}, v{8+12*n+4+r}")
            A.e(f"v_cvt_pk_bf16_f32 v{8+12*n}, v{160+4*n}, v{160+4*n+1}")
            A.e(f"v_cvt_pk_bf16_f32 v{8+12*n+1}, v{160+4*n+2}, v{160+4*n+3}")
            A.e(f"buffer_store_dwordx2 {v(8+12*n,2)}, v5, s[12:15], s{20+qt} offen offset:{32*i}")
        A.label(f"L_b_skipr{w}")
    mark(A, 240, 8)
    mark(A, 240, 8, real=True)
    A.label("L_b_done")
    A.e("s_endpgm")

def kd(name, vg, acc):
    return f""".amdhsa_kernel {name}
  .amdhsa_next_free_vgpr {vg}
  .amdhsa_next_free_sgpr 96
  .amdhsa_accum_offset {acc}
  .amdhsa_group_segment_fixed_size 0
  .amdhsa_kernarg_size 64
  .amdhsa_user_sgpr_count 2
  .amdhsa_user_sgpr_kernarg_segment_ptr 1
  .amdhsa_system_sgpr_workgroup_id_x 1
.end_amdhsa_kernel
"""

def main():
    A = Asm()
    kernel_a(A)
    kernel_b(A)
    head = f"""; MHA block with KV cache: attn_kernel (Q-proj + attention -> ws), oproj_kernel (O-proj). Generated by work/gen.py
; @launch kernel=attn_kernel grid=(256,1,1) block=(256,1,1) lds=163840
; @launch kernel=oproj_kernel grid=(256,1,1) block=(256,1,1) lds=163840
.amdgcn_target "amdgcn-amd-amdhsa--gfx950"
.text
.globl attn_kernel
.type attn_kernel,@function
.globl oproj_kernel
.type oproj_kernel,@function
"""
    tail = '.section .rodata,"a"\n.p2align 6\n' + kd("attn_kernel", 512, 256) + ".p2align 6\n" + kd("oproj_kernel", 512, 256)
    open(sys.argv[1], "w").write(head + "\n".join(A.lines) + "\n" + tail)

main()
```

```python
import sys, struct, math

NAME = "standalone__mha_block_cached__near_ridge"
OPT = dict(nt=1, thr_log2=24, prof=0, map=0, nox=0, wlin=0, nowd=0, nord=0, nofb=0, nokv=0, nobar=0, xlin=0, ntw=0, ntx=0, warm=0, ntwarm=0, kl=1, vs=1, deep=1, ost=0, xoob=0)
for a in sys.argv[2:]:
    k, v = a.split("=")
    OPT[k] = int(v)

def f32bits(x):
    return struct.unpack("<I", struct.pack("<f", x))[0]

class Asm:
    def __init__(self):
        self.lines = []
        self.vq = []
    def e(self, s):
        self.lines.append("  " + s)
    def label(self, s):
        self.lines.append(s + ":")
    def c(self, s):
        self.lines.append("  ; " + s)
    def vm(self, s, tag):
        self.e(s)
        self.vq.append(tag)
    def vmn(self, tags):
        last = -1
        for i, t in enumerate(self.vq):
            if t in tags:
                last = i
        if last < 0:
            return None
        n = len(self.vq) - 1 - last
        self.vq = self.vq[last + 1:]
        return min(n, 63)
    def wait(self, tags=(), lgkm=None, vm0=False):
        n = self.vmn(tags) if tags else None
        if vm0:
            n = 0
            self.vq = []
        s = "s_waitcnt"
        if n is not None:
            s += f" vmcnt({n})"
        if lgkm is not None:
            s += f" lgkmcnt({lgkm})"
        if s != "s_waitcnt":
            self.e(s)
    def weave(self, mf, fill):
        for i, m in enumerate(mf):
            self.e(m)
            for (s, tag) in fill.get(i, []):
                self.item(s, tag)
    def item(self, s, tag):
        if s == "WAIT":
            self.wait(tag)
        elif tag is None:
            self.e(s)
        else:
            self.vm(s, tag)

def v(i, n=1):
    return f"v{i}" if n == 1 else f"v[{i}:{i+n-1}]"
def a(i, n=1):
    return f"a{i}" if n == 1 else f"a[{i}:{i+n-1}]"
MF = "v_mfma_f32_16x16x32_bf16"

OWS = 0
WOT = 320 * 128 * 1024
WS_USED = WOT + 36 * 128 * 1024
if OPT["prof"]: WS_USED = 0x5000000
sPf = 78
OOB = 0x7F000000

vKd = 1; vVd = 5; vWd = 7; vXo = 11; vKa = 12; vVa = 16; vWa = 24; vOo = 28; vWoL = 29
vT = 30
vQ = 36; vX = 36; vAcc = 92
vKf = 116; vS = 180; vP = 196; vC = 216; vE = 236
aO = 0; aVf = 160; aWf = 160; aL = 224; aOne = 244
L_W = [0, 8192, 16384]
L_X = 24576
sXm = 47; sWarm = 49
vXr = 252
sM4 = 79; sQh = 80; sHs = 81; HB = 81920
L_V = [24576, 32768, 40960, 16384]
L_K0 = 49152
sX, sK, sV, sWQ, sWS, sWO = 8, 12, 16, 20, 24, 28
sW4 = 32; sU = 33; sKb = 34; sKn = 35; sWb = 36; sXq = 37; sOb = 42; sWoG = 43; sWoS = 45
sJob = 46; sScale = 48; sT0 = 50; sT1 = 51; sWn = 52; sFlag = 53; sU0 = 54; sWave = 55; sSlow = 56; sThr = 57
sT2 = 58; sT3 = 59
NT = " nt" if OPT["nt"] else ""
NTW = " nt" if OPT["ntw"] else ""
OSTF = {0: "", 1: " nt", 2: " sc0 sc1", 3: " sc1"}[OPT["ost"]]

def mark(A, t0=30, srd=24, real=False, lvl=1):
    if not OPT["prof"]: return
    if not real and srd == 24 and OPT["prof"] != lvl: return
    A.e("s_memrealtime s[76:77]" if real else "s_memtime s[76:77]")
    A.e("s_waitcnt lgkmcnt(0)")
    A.e(f"v_mov_b32 v{t0}, s76")
    A.e(f"v_mov_b32 v{t0+1}, s77")
    A.e(f"v_mov_b32 v{t0+2}, 0")
    A.vm(f"buffer_store_dwordx2 v[{t0}:{t0+1}], v{t0+2}, s[{srd}:{srd+3}], s{sPf} offen", "PF")
    A.e(f"s_add_u32 s{sPf}, s{sPf}, 8")

def dma_kv(kind, jj, pieces=(0, 1, 2, 3)):
    base = sKb if jj < 16 else sKn
    j = jj % 16
    slot = (L_K0 + 8192 * (jj % 4)) if kind == "K" else L_V[jj % 4]
    out = [(f"s_add_u32 m0, s{sM4}, {slot}", None),
           (f"s_add_u32 s{sT0}, s{base}, {j*8192}", None)]
    for pp in pieces:
        vo = vKd + pp if kind == "K" else vVd + (pp & 1)
        r = sK if kind == "K" else sV
        if OPT["nokv"]: out.append(("s_nop 0", None)); continue
        out.append((f"buffer_load_dwordx4 v{vo}, s[{r}:{r+3}], s{sT0} offen offset:{pp*1024}{NT} lds", f"{kind}{jj}"))
    return out

def dma_w(t, nxt=False, slot=None):
    base = sWn if nxt else sWb
    out = [(f"s_add_u32 m0, s{sM4}, {L_W[t%3] if slot is None else slot}", None),
           (f"s_add_u32 s{sT1}, s{base}, {(t*8192 if OPT['wlin']==3 else 0) if OPT['wlin'] else t*262144}", None)]
    for pp in range(4):
        if OPT["nowd"]: out.append(("s_nop 0", None)); continue
        out.append((f"buffer_load_dwordx4 v{vWd+pp}, s[{sWQ}:{sWQ+3}], s{sT1} offen offset:{pp*1024}{NTW} lds", f"W{t}"))
    return out

NTX = " nt" if OPT["ntx"] else ""
def xfrag(t, qt):
    o = 8*qt + 4*(t % 2)
    return v(36 + o, 4) if (t//2) % 2 == 0 else a(o, 4)
def ld_x(p, qt):
    po = 0 if OPT["xlin"] else 128*p
    return [(f"s_add_u32 m0, s{sXm}, {(p%2)*HB + qt*2048}", None), (f"s_add_u32 s{sT1}, s{sXq+qt}, {po}", None),
            (f"buffer_load_dwordx4 v{vXo}, s[{sX}:{sX+3}], s{sT1} offen{NTX} lds", f"X{p}")]
def rd_x(p):
    return [(f"ds_read_b128 {xfrag(2*p+ks, qt)}, v{vXr + 2*(p%2) + ks} offset:{qt*2048}", None) for ks in range(2) for qt in range(5)]

def rd_w(t, slot):
    out = []
    for T in range(8):
        for hb in range(2):
            out.append((f"ds_read_b64_tr_b16 {a(aWf + 32*(t%2) + 4*T + 2*hb, 2)}, v{(vWa if slot < L_K0 else 88) + T//2} offset:{slot % L_K0 + 8*(T%2) + 1024*hb}", None))
    return out

def rd_k(j):
    return [(f"ds_read_b128 {v(vKf + 32*(j%2) + 16*aa + 4*t, 4)}, v{vKa+t} offset:{8192*(j%4) + 4096*aa}", None)
            for aa in range(2) for t in range(4)]

def rd_v(j):
    return [(f"ds_read_b64_tr_b16 {a(aVf + 32*(j%2) + 4*T + 2*hb, 2)}, v{vVa+T} offset:{L_V[j%4] + 4096*hb}", None)
            for T in range(8) for hb in range(2)]

def spread(fill, items, slots):
    for k, grp in enumerate(items):
        fill.setdefault(slots[k], []).extend(grp)

def emit_list(A, lst):
    for s, tag in lst:
        A.item(s, tag)

def qproj(A, cold):
    A.c("---- Q-proj " + ("cold" if cold else "warm"))
    N = 18
    deep = cold and OPT["deep"]
    R7 = L_W + [L_K0 + 8192*i for i in range(4)]
    def wsl(t):
        if not deep: return L_W[t % 3]
        if t == N - 1: return L_W[0]
        return R7[t % 7]
    wiss = {}
    for t in range(3, N):
        if not deep: st = t - 3
        elif t == N - 1: st = N - 4
        else: st = max((t - 3)//2, t - 5)
        wiss.setdefault(st, []).append(t)
    kiss = {N-8+j: j for j in range(4)} if deep else ({3+2*j: j for j in range(4)} if (cold and OPT["kl"]) else {})
    if deep:
        for i in range(4): A.e(f"v_add_u32 v{88+i}, {L_K0}, v{vWa+i}")
    if cold:
        for qt in range(5): emit_list(A, ld_x(0, qt))
        emit_list(A, dma_w(0))
        if OPT["warm"]:
            ntw = " nt" if OPT["ntwarm"] else ""
            for i in range(5):
                if i < 3: A.vm(f"buffer_load_dword v76, v{vE+2+i}, s[{sX}:{sX+3}], s{sWarm} offen{ntw}", "WU")
                A.e(f"s_add_u32 s{sT1}, s{sThr}, {i*1048576}")
                A.vm(f"buffer_load_dword v77, v{vE+5}, s[{sWQ}:{sWQ+3}], s{sT1} offen{ntw}", "WU")
        emit_list(A, dma_w(1))
        for qt in range(5): emit_list(A, ld_x(1, qt))
        emit_list(A, dma_w(2))
        if not kiss:
            for jj in range(4): emit_list(A, dma_kv("K", jj))
    ml = 3 if cold else 2
    mark(A, lvl=ml)
    A.wait(["W0", "X0"])
    A.e("s_barrier")
    emit_list(A, rd_w(0, wsl(0)))
    emit_list(A, rd_x(0))
    for t in range(18):
        A.wait([f"W{t+1}"] + ([f"X{t//2+1}"] if t % 2 else []), lgkm=0)
        A.e("s_barrier")
        if t % 2 == 0: mark(A, lvl=ml)
        mf = []
        for T in range(8):
            for qt in range(5):
                f = (T//2)*5 + qt
                d = v(vAcc + 8*f + 4*(T%2), 4)
                mf.append(f"{MF} {d}, {a(aWf + 32*(t%2) + 4*T, 4)}, {xfrag(t, qt)}, {'0' if t == 0 else d}")
        fill = {}
        groups = []
        p = t//2 + 2
        if p <= 8:
            for qt in ((0, 1, 2) if t % 2 == 0 else (3, 4)): groups.append(ld_x(p, qt))
        ws_ = [dma_w(x, slot=wsl(x)) for x in wiss.get(t, [])]
        if t in kiss: ws_.append(dma_kv("K", kiss[t]))
        for w in ws_:
            groups += [w[0:3], [w[3]], [w[4]], [w[5]]]
        for vj in ({16: (0,), 17: (1,)} if OPT["vs"] else {16: (0, 1, 2), 17: (3,)}).get(t, ()):
            w = dma_kv("V", vj)
            groups += [w[0:3], [w[3]], [w[4]], [w[5]]]
        rds = [[r] for r in rd_w(t+1, wsl(t+1))] if t + 1 <= 17 else []
        if t % 2 == 1 and t//2 + 1 <= 8:
            xr = [[r] for r in rd_x(t//2 + 1)]
            spread(fill, xr, list(range(3, 33, 3)))
        spread(fill, rds, list(range(0, 32, 2)))
        spread(fill, groups, list(range(1, 40, 3)) if len(groups) > 7 else list(range(1, 36, 5)))
        A.weave(mf, fill)
    mark(A, lvl=ml)
    A.e("s_nop 7")
    for f in range(20):
        b = vAcc + 8*f
        for i in range(8):
            A.e(f"v_mul_f32 v{b+i}, s{sScale}, v{b+i}")
        for i in range(4):
            A.e(f"v_cvt_pk_bf16_f32 v{vQ+4*f+i}, v{b+2*i}, v{b+2*i+1}")
    mark(A, lvl=ml)

def qk_mf(j, qt, sb, czero=False):
    mf = []
    for t in range(4):
        for aa in range(2):
            d = v(vS + 8*sb + 4*aa, 4)
            c = d if t > 0 else ("0" if czero else v(vC + 4*qt, 4))
            mf.append(f"{MF} {d}, {v(vKf + 32*(j%2) + 16*aa + 4*t, 4)}, {v(vQ + 4*(t*5+qt), 4)}, {c}")
    return mf

def pv_mf(j, qt):
    mf = []
    for T in range(8):
        d = a(aO + 32*qt + 4*T, 4)
        mf.append(f"{MF} {d}, {a(aVf + 32*(j%2) + 4*T, 4)}, {v(vP + 4*qt, 4)}, {'0' if j == 0 else d}")
    d = a(aL + 4*qt, 4)
    mf.append(f"{MF} {d}, {a(aOne, 4)}, {v(vP + 4*qt, 4)}, {'0' if j == 0 else d}")
    return mf

def softmax_ops(sb, qt):
    s = vS + 8*sb
    ex = [[(f"v_exp_f32 v{s+i}, v{s+i}", None)] for i in range(8)]
    cv = [(f"v_cvt_pk_bf16_f32 v{vP+4*qt+i}, v{s+2*i}, v{s+2*i+1}", None) for i in range(4)]
    return ex, cv

def lane_max(A, m, t):
    A.e(f"v_mov_b32 v{t}, v{m}")
    A.e("s_nop 1")
    A.e(f"v_permlane32_swap_b32 v{t}, v{m}")
    A.e("s_nop 1")
    A.e(f"v_max_f32 v{m}, v{t}, v{m}")
    A.e(f"v_mov_b32 v{t}, v{m}")
    A.e("s_nop 1")
    A.e(f"v_permlane16_swap_b32 v{t}, v{m}")
    A.e("s_nop 1")
    A.e(f"v_max_f32 v{m}, v{t}, v{m}")

def maxpass(A):
    A.c("---- max pass (fallback)")
    for qt in range(5):
        A.e(f"v_mov_b32 v{vE+qt}, 0xff800000")
    A.e(f"s_mov_b32 s{sT2}, s{sKb}")
    A.e(f"s_add_u32 s{sT3}, s{sKb}, 131072")
    A.label("L_maxloop")
    A.e("s_barrier")
    A.e(f"s_add_u32 m0, s{sM4}, {L_W[0]}")
    A.e("s_nop 0")
    for pp in range(4):
        A.e(f"buffer_load_dwordx4 v{vKd+pp}, s[{sK}:{sK+3}], s{sT2} offen offset:{pp*1024} lds")
    A.e("s_waitcnt vmcnt(0)")
    A.e("s_barrier")
    for t in range(4):
        A.e(f"v_subrev_u32 v{vT+t}, {L_K0}, v{vKa+t}")
    for aa in range(2):
        for t in range(4):
            A.e(f"ds_read_b128 {v(vKf + 16*aa + 4*t, 4)}, v{vT+t} offset:{L_W[0] + 4096*aa}")
    A.e("s_waitcnt lgkmcnt(0)")
    for qt in range(5):
        for m in qk_mf(0, qt, 0, czero=True): A.e(m)
        A.e("s_nop 7")
        s = vS
        for i in range(4):
            A.e(f"v_max3_f32 v{vE+qt}, v{s+2*i}, v{s+2*i+1}, v{vE+qt}")
        A.e("s_nop 3")
    A.e(f"s_add_u32 s{sT2}, s{sT2}, 8192")
    A.e(f"s_cmp_lt_u32 s{sT2}, s{sT3}")
    A.e("s_cbranch_scc1 L_maxloop")
    for qt in range(5):
        lane_max(A, vE+qt, vT)
        for i in range(4):
            A.e(f"v_sub_f32 v{vC+4*qt+i}, 0, v{vE+qt}")
    A.e("s_barrier")

def attention(A):
    A.c("---- attention prologue")
    A.vq = [f"V{j}" for j in range(2 if OPT["vs"] else 4) for _ in range(4)]
    mark(A)
    if OPT["vs"]: emit_list(A, dma_kv("V", 2))
    A.e(f"s_cmp_eq_u32 s{sSlow}, 0")
    A.e("s_cbranch_scc1 L_nomax")
    maxpass(A)
    A.label("L_nomax")
    emit_list(A, rd_k(0))
    emit_list(A, rd_k(1))
    A.wait(lgkm=8)
    for m in qk_mf(0, 0, 1, czero=True): A.e(m)
    for qt in range(5):
        sb = (qt + 1) % 2
        s = vS + 8*sb
        if qt == 2 and OPT["vs"]: emit_list(A, dma_kv("V", 3))
        if qt < 4:
            for m in qk_mf(0, qt+1, qt % 2, czero=True): A.e(m)
        else:
            A.wait(["V0"])
            A.e("s_barrier")
            emit_list(A, rd_v(0))
        m = vT; t = vT + 1
        A.e(f"v_max3_f32 v{m}, v{s}, v{s+1}, v{s+2}")
        A.e(f"v_max3_f32 v{m}, v{s+3}, v{s+4}, v{m}")
        A.e(f"v_max3_f32 v{m}, v{s+5}, v{s+6}, v{m}")
        A.e(f"v_max_f32 v{m}, v{s+7}, v{m}")
        lane_max(A, m, t)
        A.e(f"v_sub_f32 v{m}, 0, v{m}")
        for i in range(4):
            A.e(f"v_cndmask_b32 v{vC+4*qt+i}, v{m}, v{vC+4*qt+i}, s[60:61]")
        for i in range(8):
            A.e(f"v_add_f32 v{s+i}, v{s+i}, v{vC+4*qt}")
        if qt < 4:
            ex, cv = softmax_ops(sb, qt)
            for g in ex: emit_list(A, g)
            A.e("s_nop 0")
            emit_list(A, cv)
    mark(A)
    for j in range(16):
        A.c(f"---- iter {j}")
        A.wait([f"K{j+2}", f"V{j+1}"] if j < 15 else [], lgkm=0)
        A.e("s_barrier")
        vmg = []
        def addkv(kind, jj):
            kv = dma_kv(kind, jj)
            vmg.extend([kv[0:3], [kv[3]], [kv[4]], [kv[5]]])
        if j >= 14:
            for qt in range(5): vmg.append(ld_x(j - 14, qt))
        if j == 0: addkv("K", 4)
        if j + 5 <= 19: addkv("K", j+5)
        if j + 4 <= 15: addkv("V", j+4)
        wt = {12: 0, 13: 1, 15: 2}.get(j)
        if wt is not None:
            w = dma_w(wt, nxt=True)
            vmg.extend([w[0:3], [w[3]], [w[4]], [w[5]]])
        if j == 14:
            for i in range(3):
                for e8 in range(8):
                    vmg.append([(f"buffer_load_ushort v{vKf + 8*i + e8}, v{vWoL}, s[{sWO}:{sWO+3}], s{sWoG + e8//4} offen offset:{(e8%4)*1152 + 32*i}", "G")])

        rds = []
        if j + 2 <= 15: rds += [[r] for r in rd_k(j+2)]
        if j + 1 <= 15: rds += [[r] for r in rd_v(j+1)]
        others = []
        i1 = i2 = 0
        while i1 < len(vmg) or i2 < len(rds):
            if i2 < len(rds): others.append(rds[i2]); i2 += 1
            if i1 < len(vmg): others.append(vmg[i1]); i1 += 1
        for qt in range(5):
            n = 5*j + qt
            mf = (qk_mf(j+1, qt, n % 2) if j < 15 else []) + pv_mf(j, qt)
            fill = {}
            nm = len(mf)
            do_sm = (j < 15) or qt == 0
            free = list(range(nm))
            if do_sm:
                ex, cv = softmax_ops((n-1) % 2, (qt - 1) % 5)
                if nm == 17:
                    exs = [0, 2, 4, 6, 8, 10, 12, 13]; cvs = [14, 15]
                else:
                    exs = [0, 1, 2, 3, 4, 5, 6, 7]; cvs = [8, 8]
                spread(fill, ex, exs)
                if cvs[0] == 8: fill.setdefault(8, [])
                fill.setdefault(cvs[0], []).extend(cv[0:2])
                fill.setdefault(cvs[1], []).extend(cv[2:4])
                free = [s for s in range(nm) if s not in exs and s not in cvs]
                if not free: free = [8]
            rem = 5 - qt
            k = -(-len(others) // rem) if qt < 4 else len(others)
            k = max(k, min(len(others), len(free)))
            take, others = others[:k], others[k:]
            for idx, g in enumerate(take):
                fill.setdefault(free[idx % len(free)] if len(take) <= len(free) else free[idx * len(free) // len(take)], []).extend(g)
            A.weave(mf, fill)
    A.c("---- epilogue")
    mark(A)
    A.e("s_nop 7")
    A.e("s_mov_b64 s[62:63], 0")
    for qt in range(5):
        A.e(f"v_accvgpr_read_b32 v{vC+qt}, a{aL+4*qt}")
    for qt in range(5):
        A.e(f"v_cmp_nlt_f32 vcc, v{vC+qt}, v{vT+5}")
        A.e(f"v_rcp_f32 v{vC+qt}, v{vC+qt}")
        A.e("s_or_b64 s[62:63], s[62:63], vcc")
    k = 0
    for qt in range(5):
        for jp in range(4):
            tb = [vS, vS+8, vP, vP+8][k % 4]
            ob = vE + 4*(k % 4)
            k += 1
            for i in range(8):
                A.e(f"v_accvgpr_read_b32 v{tb+i}, a{aO + 32*qt + 8*jp + i}")
            for i in range(8):
                A.e(f"v_mul_f32 v{tb+i}, v{tb+i}, v{vC+qt}")
            for i in range(4):
                A.e(f"v_cvt_pk_bf16_f32 v{ob+i}, v{tb+2*i}, v{tb+2*i+1}")
            if jp == 0:
                A.e(f"s_add_u32 s{sT0}, s{sOb}, {qt*131072}")
            A.vm(f"buffer_store_dwordx4 {v(ob,4)}, v{vOo}, s[{sWS}:{sWS+3}], s{sT0} offen offset:{jp*1024}{OSTF}", "ST")
    A.wait(["G"])
    for i in range(3):
        for p in range(4):
            A.e(f"v_lshl_or_b32 v{vKf+32+4*i+p}, v{vKf+8*i+2*p+1}, 16, v{vKf+8*i+2*p}")
        A.e(f"s_add_u32 s{sT0}, s{sWoS}, {i*131072}")
        A.vm(f"buffer_store_dwordx4 {v(vKf+32+4*i,4)}, v{vOo}, s[{sWS}:{sWS+3}], s{sT0} offen", "ST")
    mark(A)

def unit_setup(A):
    A.e(f"s_lshl_b32 s{sKb}, s{sU}, 17")
    A.e(f"s_xor_b32 s{sKn}, s{sKb}, 262144")
    A.e(f"s_and_b32 s{sT0}, s{sU}, 31")
    A.e(f"s_lshl_b32 s{sWb}, s{sT0}, 8")
    A.e(f"s_xor_b32 s{sWn}, s{sWb}, 512")
    if OPT["wlin"] == 3:
        A.e(f"s_mul_i32 s{sWb}, s{sWb}, 576")
        A.e(f"s_mul_i32 s{sWn}, s{sWn}, 576")
    A.e(f"s_cmp_eq_u32 s{sJob}, 0")
    A.e(f"s_cselect_b32 s{sKn}, s{sKn}, {OOB}")
    A.e(f"s_cselect_b32 s{sWn}, s{sWn}, {OOB}")
    A.e(f"s_lshr_b32 s{sT1}, s{sU}, 5")
    A.e(f"s_mul_i32 s{sT1}, s{sT1}, 10")
    A.e(f"s_mul_i32 s{sT2}, s{sQh}, 5")
    A.e(f"s_add_u32 s{sT1}, s{sT1}, s{sT2}")
    A.e(f"s_lshl_b32 s{sT1}, s{sT1}, 17")
    A.e(f"s_lshl_b32 s{sT0}, s{sT0}, 12")
    A.e(f"s_add_u32 s{sOb}, s{sT1}, s{sT0}")
    A.e(f"s_lshl_b32 s{sT0}, s{sU}, 1")
    A.e(f"s_add_u32 s{sT0}, s{sT0}, s{sQh}")
    A.e(f"s_lshr_b32 s{sT1}, s{sT0}, 4")
    A.e(f"s_and_b32 s{sT0}, s{sT0}, 15")
    A.e(f"s_mul_i32 s{sT2}, s{sT1}, {32*1152}")
    A.e(f"s_mul_i32 s{sT3}, s{sT0}, 96")
    A.e(f"s_add_u32 s{sWoG}, s{sT2}, s{sT3}")
    A.e(f"s_add_u32 s{sWoG+1}, s{sWoG}, {16*1152}")
    A.e(f"s_mul_i32 s{sT2}, s{sT0}, {3*131072}")
    A.e(f"s_lshl_b32 s{sT3}, s{sT1}, 10")
    A.e(f"s_add_u32 s{sT2}, s{sT2}, s{sT3}")
    A.e(f"s_add_u32 s{sWoS}, s{sT2}, {WOT}")
    A.e(f"s_cmp_lt_u32 s{sT0}, 12")
    A.e(f"s_cselect_b32 s{sWoG}, s{sWoG}, {OOB}")
    A.e(f"s_cselect_b32 s{sWoG+1}, s{sWoG+1}, {OOB}")
    A.e(f"s_cselect_b32 s{sWoS}, s{sWoS}, {OOB}")
    A.e(f"s_cmp_lg_u32 s{sSlow}, 0")
    A.e("s_cselect_b64 s[60:61], -1, 0")

def mk_srd(A, s, p, nbytes):
    A.e(f"s_mov_b32 s{s}, s{p}")
    A.e(f"s_and_b32 s{s+1}, s{p+1}, 0xffff")
    A.e(f"s_mov_b32 s{s+2}, {nbytes}")
    A.e(f"s_mov_b32 s{s+3}, 0x00020000")

def kernel_a(A):
    A.lines.append(".p2align 8")
    A.label("attn_kernel")
    A.e("s_cmp_ge_u32 s2, 256")
    A.e("s_cbranch_scc1 L_a_done")
    A.e("s_load_dwordx8 s[64:71], s[0:1], 0")
    A.e("s_load_dwordx2 s[72:73], s[0:1], 32")
    A.e("s_load_dwordx2 s[74:75], s[0:1], 56")
    L, g, q, r, c = vT, vT+1, vT+2, vT+3, vT+4
    A.e(f"v_lshrrev_b32 v{g}, 6, v0")
    A.e(f"v_and_b32 v{L}, 63, v0")
    A.e("s_nop 0")
    A.e(f"v_readfirstlane_b32 s{sWave}, v{g}")
    A.e(f"v_lshrrev_b32 v{g}, 4, v{L}")
    A.e(f"v_and_b32 v{q}, 15, v{L}")
    A.e(f"v_lshrrev_b32 v{r}, 2, v{q}")
    A.e(f"v_and_b32 v{c}, 3, v{L}")
    A.e(f"s_and_b32 s{sQh}, s{sWave}, 1")
    A.e(f"s_lshr_b32 s{sHs}, s{sWave}, 1")
    A.e(f"s_lshl_b32 s{sW4}, s{sQh}, 12")
    A.e(f"s_mul_i32 s{sT3}, s{sHs}, {HB}")
    A.e(f"s_add_u32 s{sM4}, s{sW4}, s{sT3}")
    t0, t1 = vE, vE+1
    for pp in range(4):
        A.e(f"v_add_u32 v{t0}, {4*pp}, v{g}")
        A.e(f"v_xor_b32 v{t0}, v{t0}, v{q}")
        A.e(f"v_lshlrev_b32 v{t0}, 4, v{t0}")
        A.e(f"v_lshl_add_u32 v{t0}, v{g}, 8, v{t0}")
        A.e(f"v_add_u32 v{vKd+pp}, s{sW4}, v{t0}")
    for p1 in range(2):
        A.e(f"v_add_u32 v{t0}, {4*p1}, v{g}")
        A.e(f"v_lshlrev_b32 v{t0}, 1, v{t0}")
        A.e(f"v_xor_b32 v{t0}, v{t0}, v{q}")
        A.e(f"v_lshlrev_b32 v{t0}, 4, v{t0}")
        A.e(f"v_lshl_add_u32 v{t0}, v{g}, 8, v{t0}")
        A.e(f"v_add_u32 v{vVd+p1}, s{sW4}, v{t0}")
    A.e(f"s_lshl_b32 s{sT0}, s{sQh}, 17")
    for pp in range(4):
        A.e(f"v_lshlrev_b32 v{t0}, 2, v{g}")
        A.e(f"v_xor_b32 v{t0}, v{t0}, v{q}")
        A.e(f"v_lshlrev_b32 v{t0}, 4, v{t0}")
        A.e(f"v_lshl_add_u32 v{t0}, v{g}, 13, v{t0}")
        A.e(f"v_add_u32 v{t0}, {pp*32768 - pp*1024}, v{t0}")
        A.e(f"v_add_u32 v{vWd+pp}, s{sT0}, v{t0}")
        if OPT["wlin"] == 2: A.e(f"v_lshlrev_b32 v{vWd+pp}, 4, v{L}")
        if OPT["wlin"] == 3:
            A.e(f"v_lshlrev_b32 v{vWd+pp}, 4, v{L}")
            A.e(f"v_add_u32 v{vWd+pp}, s{sW4}, v{vWd+pp}")
    A.e(f"s_mul_i32 s{sT0}, s{sQh}, {80*1152}")
    A.e(f"s_mul_i32 s{sT1}, s{sHs}, {8*1152}")
    A.e(f"s_add_u32 s{sT0}, s{sT0}, s{sT1}")
    A.e(f"v_lshrrev_b32 v{t1}, 3, v{L}")
    A.e(f"v_mul_u32_u24 v{t0}, 1152, v{t1}")
    A.e(f"v_and_b32 v{vXo}, 7, v{L}")
    A.e(f"v_xor_b32 v{vXo}, v{vXo}, v{t1}")
    A.e(f"v_lshl_add_u32 v{t0}, v{vXo}, 4, v{t0}")
    A.e(f"v_add_u32 v{vXo}, s{sT0}, v{t0}")
    A.e(f"s_mul_i32 s{sXm}, s{sQh}, 10240")
    A.e(f"s_add_u32 s{sXm}, s{sXm}, {L_X}")
    A.e(f"v_and_b32 v{t0}, 7, v{q}")
    A.e(f"v_xor_b32 v{t0}, v{t0}, v{g}")
    A.e(f"v_lshlrev_b32 v{t0}, 4, v{t0}")
    A.e(f"v_lshl_add_u32 v{t0}, v{q}, 7, v{t0}")
    A.e(f"v_add_u32 v{vXr}, s{sXm}, v{t0}")
    A.e(f"v_xor_b32 v{vXr+1}, 64, v{vXr}")
    A.e(f"v_add_u32 v{vXr+2}, {HB}, v{vXr}")
    A.e(f"v_add_u32 v{vXr+3}, {HB}, v{vXr+1}")
    A.e(f"s_lshl_b32 s{sT1}, s{sHs}, 10")
    A.e(f"s_add_u32 s{sXm}, s{sXm}, s{sT1}")
    A.e(f"s_lshr_b32 s{sT0}, s2, 3")
    A.e(f"s_lshl_b32 s{sT0}, s{sT0}, 2")
    A.e(f"s_add_u32 s{sT0}, s{sT0}, s{sWave}")
    A.e(f"s_mul_i32 s{sWarm}, s{sT0}, 11520")
    A.e(f"s_bfe_u32 s{sT1}, s2, 0x20001")
    A.e(f"s_mul_i32 s{sT1}, s{sT1}, {8*184320}")
    A.e(f"s_add_u32 s{sWarm}, s{sWarm}, s{sT1}")
    A.e(f"s_lshr_b32 s{sThr}, s{sT0}, 1")
    A.e(f"s_lshl_b32 s{sThr}, s{sThr}, 13")
    A.e(f"s_and_b32 s{sT1}, s2, 1")
    A.e(f"s_lshl_b32 s{sT1}, s{sT1}, 12")
    A.e(f"s_add_u32 s{sThr}, s{sThr}, s{sT1}")
    A.e(f"s_lshl_b32 s{sT1}, s{sQh}, 11")
    A.e(f"s_add_u32 s{sThr}, s{sThr}, s{sT1}")
    for t in range(4):
        A.e(f"v_add_u32 v{t0}, {4*t}, v{g}")
        A.e(f"v_xor_b32 v{t0}, v{t0}, v{q}")
        A.e(f"v_lshlrev_b32 v{t0}, 4, v{t0}")
        A.e(f"v_lshl_add_u32 v{t0}, v{q}, 8, v{t0}")
        A.e(f"v_add_u32 v{t0}, {L_K0}, v{t0}")
        A.e(f"v_add_u32 v{vKa+t}, s{sT3}, v{t0}")
    A.e(f"v_and_b32 v{t1}, 1, v{g}")
    A.e(f"v_lshl_add_u32 v{t1}, v{t1}, 2, v{r}")
    A.e(f"v_lshlrev_b32 v{t1}, 1, v{t1}")
    for T in range(8):
        A.e(f"v_lshrrev_b32 v{t0}, 1, v{c}")
        A.e(f"v_add_u32 v{t0}, {2*T}, v{t0}")
        A.e(f"v_xor_b32 v{t0}, v{t0}, v{t1}")
        A.e(f"v_lshlrev_b32 v{t0}, 4, v{t0}")
        A.e(f"v_lshl_add_u32 v{vVa+T}, v{g}, 2, v{r}")
        A.e(f"v_lshl_add_u32 v{t0}, v{vVa+T}, 8, v{t0}")
        A.e(f"v_and_b32 v{vVa+T}, 1, v{c}")
        A.e(f"v_lshl_add_u32 v{vVa+T}, v{vVa+T}, 3, v{t0}")
        A.e(f"v_add_u32 v{vVa+T}, s{sT3}, v{vVa+T}")
    for tt in range(4):
        A.e(f"v_xor_b32 v{t0}, {tt}, v{r}")
        A.e(f"v_lshl_add_u32 v{t0}, v{t0}, 2, v{c}")
        A.e(f"v_lshlrev_b32 v{t0}, 4, v{t0}")
        A.e(f"v_lshl_add_u32 v{t1}, v{g}, 3, v{r}")
        A.e(f"v_lshl_add_u32 v{vWa+tt}, v{t1}, 8, v{t0}")
        A.e(f"v_add_u32 v{vWa+tt}, s{sT3}, v{vWa+tt}")
    A.e(f"v_lshlrev_b32 v{vOo}, 4, v{L}")
    A.e(f"v_mul_u32_u24 v{t0}, {4*1152}, v{g}")
    A.e(f"v_lshl_add_u32 v{vWoL}, v{q}, 1, v{t0}")
    A.e(f"v_mov_b32 v{t0}, 0x3f803f80")
    for i in range(4):
        A.e(f"v_accvgpr_write_b32 a{aOne+i}, v{t0}")
    A.e(f"v_mov_b32 v{vT+5}, {f32bits(2.0**OPT['thr_log2'])}")
    A.e(f"s_mov_b32 s{sScale}, {f32bits(math.log2(math.e)/math.sqrt(128.0))}")
    A.e(f"s_bfe_u32 s{sT2}, s2, 0x20001")
    A.e(f"s_lshl_b32 s{sT2}, s{sT2}, 3")
    A.e(f"s_bfe_u32 s{sT3}, s2, 0x30003")
    A.e(f"s_add_u32 s{sT2}, s{sT2}, s{sT3}")
    A.e(f"s_and_b32 s{sT0}, s2, 1")
    A.e(f"s_lshl_b32 s{sT0}, s{sT0}, 2")
    A.e(f"s_lshr_b32 s{sT1}, s2, 6")
    A.e(f"s_add_u32 s{sT0}, s{sT0}, s{sT1}")
    A.e(f"s_lshl_b32 s{sU0}, s{sT2}, 5")
    A.e(f"s_lshl_b32 s{sT0}, s{sT0}, 2")
    A.e(f"s_add_u32 s{sU0}, s{sU0}, s{sT0}")
    A.e(f"s_add_u32 s{sU0}, s{sU0}, s{sHs}")
    A.e(f"s_mul_i32 s{sXq}, s{sT2}, 184320")
    for qt in range(1, 5):
        A.e(f"s_add_u32 s{sXq+qt}, s{sXq}, {qt*18432}")
    A.e(f"s_mov_b32 s{sU}, s{sU0}")
    A.e(f"s_mov_b32 s{sJob}, 0")
    A.e(f"s_mov_b32 s{sSlow}, 0")
    A.e(f"s_mov_b32 s{sFlag}, 0")
    A.e("s_waitcnt lgkmcnt(0)")
    mk_srd(A, sX, 64, 32*160*576*2)
    mk_srd(A, sK, 66, 134217728)
    mk_srd(A, sV, 68, 134217728)
    mk_srd(A, sWQ, 70, 576*4096*2)
    mk_srd(A, sWO, 72, 576*4096*2)
    mk_srd(A, sWS, 74, WS_USED)
    A.e(f"s_lshl_b32 s{sPf}, s2, 2")
    A.e(f"s_add_u32 s{sPf}, s{sPf}, s{sWave}")
    A.e(f"s_lshl_b32 s{sPf}, s{sPf}, 7")
    A.e(f"s_add_u32 s{sPf}, s{sPf}, 0x4000000")
    mark(A, real=True)
    mark(A)
    A.label("L_cold")
    unit_setup(A)
    A.e(f"v_lshrrev_b32 v{vE}, 4, v{vOo}")
    for i in range(3):
        A.e(f"v_add_u32 v{vE+1}, {64*i}, v{vE}")
        A.e(f"v_mul_u32_u24 v{vE+5}, 205, v{vE+1}")
        A.e(f"v_lshrrev_b32 v{vE+5}, 11, v{vE+5}")
        A.e(f"v_mul_u32_u24 v{vE+6}, 10, v{vE+5}")
        A.e(f"v_sub_u32 v{vE+1}, v{vE+1}, v{vE+6}")
        A.e(f"v_mul_u32_u24 v{vE+1}, 1152, v{vE+1}")
        A.e(f"v_lshl_add_u32 v{vE+2+i}, v{vE+5}, 6, v{vE+1}")
    A.e(f"v_and_b32 v{vE+1}, 31, v{vE}")
    A.e(f"v_lshrrev_b32 v{vE+5}, 5, v{vE}")
    A.e(f"v_lshlrev_b32 v{vE+5}, 19, v{vE+5}")
    A.e(f"v_lshl_add_u32 v{vE+5}, v{vE+1}, 6, v{vE+5}")
    A.vq = []
    qproj(A, True)
    A.e("s_branch L_att")
    B = Asm()
    attention(B)
    tailq = list(B.vq)
    A.label("L_warm")
    unit_setup(A)
    A.vq = tailq
    qproj(A, False)
    A.label("L_att")
    A.lines += B.lines
    A.e("s_cmp_lg_u64 s[62:63], 0")
    A.e(f"s_cselect_b32 s{sT0}, 1, 0")
    A.e(f"s_and_b32 s{sT1}, s{sJob}, 1")
    A.e(f"s_lshl_b32 s{sT0}, s{sT0}, s{sT1}")
    A.e(f"s_or_b32 s{sFlag}, s{sFlag}, s{sT0}")
    A.e(f"s_add_u32 s{sJob}, s{sJob}, 1")
    A.e(f"s_cmp_eq_u32 s{sJob}, 1")
    A.e("s_cbranch_scc0 L_notwarm")
    A.e(f"s_xor_b32 s{sU}, s{sU0}, 2")
    A.e("s_branch L_warm")
    A.label("L_notwarm")
    A.e(f"s_cmp_eq_u32 s{sJob}, 2")
    A.e("s_cbranch_scc0 L_noexch")
    A.e("s_waitcnt vmcnt(0) lgkmcnt(0)")
    A.e("s_barrier")
    A.e(f"v_mov_b32 v{vT}, s{sWave}")
    A.e(f"v_lshlrev_b32 v{vT}, 2, v{vT}")
    A.e(f"v_mov_b32 v{vT+1}, s{sFlag}")
    A.e(f"ds_write_b32 v{vT}, v{vT+1}")
    A.e("s_waitcnt lgkmcnt(0)")
    A.e("s_barrier")
    A.e(f"v_mov_b32 v{vT}, 0")
    A.e(f"ds_read_b128 v[{vE}:{vE+3}], v{vT}")
    A.e("s_waitcnt lgkmcnt(0)")
    A.e(f"v_or3_b32 v{vT+2}, v{vE}, v{vE+1}, v{vE+2}")
    A.e(f"v_or_b32 v{vT+2}, v{vT+2}, v{vE+3}")
    A.e("s_nop 0")
    A.e(f"v_readfirstlane_b32 s{sSlow}, v{vT+2}")
    A.e("s_nop 3")
    A.e("s_barrier")
    mark(A)
    mark(A, real=True)
    A.label("L_noexch")
    A.e(f"s_and_b32 s{sT0}, s{sSlow}, {0 if OPT['nofb'] else 3}")
    A.e(f"s_cmp_eq_u32 s{sT0}, 0")
    A.e("s_cbranch_scc1 L_a_done")
    A.e(f"s_and_b32 s{sT1}, s{sSlow}, 1")
    A.e(f"s_xor_b32 s{sT1}, s{sT1}, 1")
    A.e(f"s_lshl_b32 s{sT2}, s{sT1}, 1")
    A.e(f"s_xor_b32 s{sU}, s{sU0}, s{sT2}")
    A.e(f"s_add_u32 s{sT1}, s{sT1}, 1")
    A.e(f"s_andn2_b32 s{sSlow}, s{sSlow}, s{sT1}")
    A.e(f"s_or_b32 s{sSlow}, s{sSlow}, 4")
    A.e("s_waitcnt vmcnt(0) lgkmcnt(0)")
    A.e("s_barrier")
    A.e("s_branch L_cold")
    A.label("L_a_done")
    A.e("s_endpgm")

def kernel_b(A):
    ST = 5
    A.lines.append(".p2align 8")
    A.label("oproj_kernel")
    A.e("s_cmp_ge_u32 s2, 256")
    A.e("s_cbranch_scc1 L_b_done")
    A.e("s_load_dwordx2 s[4:5], s[0:1], 40")
    A.e("s_load_dwordx2 s[6:7], s[0:1], 56")
    A.e("v_lshrrev_b32 v1, 6, v0")
    A.e("v_and_b32 v2, 63, v0")
    A.e("s_nop 0")
    A.e("v_readfirstlane_b32 s3, v1")
    A.e("v_lshlrev_b32 v3, 4, v2")
    A.e("s_and_b32 s16, s2, 7")
    A.e("s_lshl_b32 s16, s16, 3")
    A.e("s_lshr_b32 s17, s2, 5")
    A.e("s_add_u32 s16, s16, s17")
    A.e("s_lshr_b32 s17, s2, 3")
    A.e("s_and_b32 s17, s17, 3")
    A.e("s_lshl_b32 s18, s3, 15")
    A.e(f"s_mul_i32 s20, s16, {5*131072}")
    A.e("s_add_u32 s20, s20, s18")
    for qt in range(1, 5):
        A.e(f"s_add_u32 s{20+qt}, s20, {qt*131072}")
    A.e(f"s_mul_i32 s25, s17, {9*131072}")
    A.e("s_add_u32 s25, s25, s18")
    A.e(f"s_add_u32 s25, s25, {WOT}")
    for i in range(1, 9):
        A.e(f"s_add_u32 s{25+i}, s25, {i*131072}")
    A.e("s_waitcnt lgkmcnt(0)")
    mk_srd(A, 8, 6, WS_USED)
    mk_srd(A, 12, 4, 32*160*576*2)
    def sreg(st, i):
        return (v(8 + 56*st + 4*i, 4) if st < 4 else a(180 + 4*i, 4))
    A.e("v_add_u32 v4, 4096, v3")
    A.e("v_add_u32 v5, 4096, v4")
    A.e("v_add_u32 v6, 4096, v5")
    A.e("v_add_u32 v7, 4096, v6")
    A.e("v_add_u32 v232, 4096, v7")
    A.e("v_add_u32 v233, 4096, v232")
    A.e("v_add_u32 v234, 4096, v233")
    vo = [3, 4, 5, 6, 7, 232, 233, 234]
    def loads(s):
        st = s % ST
        out = []
        order = [0, 5, 1, 2, 3, 4, 6, 7, 8, 9, 10, 11, 12, 13]
        for i in order:
            out.append((f"buffer_load_dwordx4 {sreg(st, i)}, v{vo[s//4]}, s[8:11], s{20+i} offen offset:{(s%4)*1024}", f"L{s}"))
        return out
    A.vq = []
    A.e(f"s_lshl_b32 s{sPf}, s2, 2")
    A.e(f"s_add_u32 s{sPf}, s{sPf}, s3")
    A.e(f"s_lshl_b32 s{sPf}, s{sPf}, 7")
    A.e(f"s_add_u32 s{sPf}, s{sPf}, 0x4100000")
    mark(A, 240, 8, real=True)
    mark(A, 240, 8)
    for s in range(ST - 1):
        emit_list(A, loads(s))
    for s in range(32):
        A.wait([f"L{s}"])
        if s == 0: mark(A, 240, 8)
        mf = []
        for i in range(9):
            for qt in range(5):
                d = a(4*(i*5+qt), 4)
                mf.append(f"{MF} {d}, {sreg(s%ST, 5+i)}, {sreg(s%ST, qt)}, {'0' if s == 0 else d}")
        fill = {}
        if s + ST - 1 < 32:
            spread(fill, [[x] for x in loads(s + ST - 1)], list(range(1, 45, 3)))
        A.weave(mf, fill)
    A.e("s_nop 7")
    mark(A, 240, 8)
    for w in range(4):
        A.e(f"s_cmp_eq_u32 s3, {w}")
        A.e(f"s_cbranch_scc1 L_b_skipw{w}")
        A.e(f"s_cmp_gt_u32 s3, {w}")
        A.e(f"s_cselect_b32 s18, 1, 0")
        A.e(f"s_sub_u32 s18, s3, s18")
        A.e(f"s_mul_i32 s18, s18, 12288")
        A.e(f"s_add_u32 s18, s18, {w*36864}")
        A.e("v_add_u32 v4, s18, v3")
        for n, ti in enumerate([ti for ti in range(45) if ti % 4 == w]):
            A.e(f"ds_write_b128 v4, {a(4*ti,4)} offset:{n*1024}")
        A.label(f"L_b_skipw{w}")
    A.e("s_waitcnt lgkmcnt(0)")
    A.e("s_barrier")
    A.e("v_and_b32 v5, 15, v2")
    A.e("v_mul_u32_u24 v5, 1152, v5")
    A.e("v_lshrrev_b32 v6, 4, v2")
    A.e("v_lshl_add_u32 v5, v6, 3, v5")
    A.e(f"s_mul_i32 s18, s16, {80*1152}")
    A.e("s_mul_i32 s19, s17, 288")
    A.e("s_add_u32 s18, s18, s19")
    for qt in range(5):
        A.e(f"s_add_u32 s{20+qt}, s18, {qt*16*1152}")
    A.e("s_mul_i32 s18, s3, 36864")
    A.e("v_add_u32 v232, s18, v3")
    for w in range(4):
        A.e(f"s_cmp_lg_u32 s3, {w}")
        A.e(f"s_cbranch_scc1 L_b_skipr{w}")
        tis = [ti for ti in range(45) if ti % 4 == w]
        srcs = [x for x in range(4) if x != w]
        for n, ti in enumerate(tis):
            for k, sw in enumerate(srcs):
                A.e(f"ds_read_b128 {v(8 + 12*n + 4*k, 4)}, v232 offset:{(k*12+n)*1024}")
        for n, ti in enumerate(tis):
            for r in range(4):
                A.e(f"v_accvgpr_read_b32 v{160+4*n+r}, a{4*ti+r}")
        A.e("s_waitcnt lgkmcnt(0)")
        for n, ti in enumerate(tis):
            i, qt = ti // 5, ti % 5
            for r in range(4):
                A.e(f"v_add_f32 v{160+4*n+r}, v{160+4*n+r}, v{8+12*n+r}")
                A.e(f"v_add_f32 v{8+12*n+4+r}, v{8+12*n+4+r}, v{8+12*n+8+r}")
            for r in range(4):
                A.e(f"v_add_f32 v{160+4*n+r}, v{160+4*n+r}, v{8+12*n+4+r}")
            A.e(f"v_cvt_pk_bf16_f32 v{8+12*n}, v{160+4*n}, v{160+4*n+1}")
            A.e(f"v_cvt_pk_bf16_f32 v{8+12*n+1}, v{160+4*n+2}, v{160+4*n+3}")
            A.e(f"buffer_store_dwordx2 {v(8+12*n,2)}, v5, s[12:15], s{20+qt} offen offset:{32*i}")
        A.label(f"L_b_skipr{w}")
    mark(A, 240, 8)
    mark(A, 240, 8, real=True)
    A.label("L_b_done")
    A.e("s_endpgm")

def kd(name, vg, acc):
    return f""".amdhsa_kernel {name}
  .amdhsa_next_free_vgpr {vg}
  .amdhsa_next_free_sgpr 96
  .amdhsa_accum_offset {acc}
  .amdhsa_group_segment_fixed_size 0
  .amdhsa_kernarg_size 64
  .amdhsa_user_sgpr_count 2
  .amdhsa_user_sgpr_kernarg_segment_ptr 1
  .amdhsa_system_sgpr_workgroup_id_x 1
.end_amdhsa_kernel
"""

def main():
    A = Asm()
    kernel_a(A)
    kernel_b(A)
    head = f"""; MHA block with KV cache: attn_kernel (Q-proj + attention -> ws), oproj_kernel (O-proj). Generated by work/gen.py
; @launch kernel=attn_kernel grid=(256,1,1) block=(256,1,1) lds=163840
; @launch kernel=oproj_kernel grid=(256,1,1) block=(256,1,1) lds=163840
.amdgcn_target "amdgcn-amd-amdhsa--gfx950"
.text
.globl attn_kernel
.type attn_kernel,@function
.globl oproj_kernel
.type oproj_kernel,@function
"""
    tail = '.section .rodata,"a"\n.p2align 6\n' + kd("attn_kernel", 512, 256) + ".p2align 6\n" + kd("oproj_kernel", 512, 256)
    open(sys.argv[1], "w").write(head + "\n".join(A.lines) + "\n" + tail)

main()
```

```python
import sys, struct, math

NAME = "standalone__mha_block_cached__near_ridge"
OPT = dict(nt=1, thr_log2=24, prof=0, map=0, nox=0, wlin=0, nowd=0, nord=0, nofb=0, nokv=0, nobar=0, xlin=0, ntw=0, ntx=0, warm=0, ntwarm=0, kl=1, vs=1, deep=1, ost=0, xoob=0, rot=0, qrot=0, bnt=0, wnt=0, wst=0, ont=0, ept=2, vreg=2, vst=5, cst=3, cs=0, wsn=0)
for a in sys.argv[2:]:
    k, v = a.split("=")
    OPT[k] = int(v)

def f32bits(x):
    return struct.unpack("<I", struct.pack("<f", x))[0]

class Asm:
    def __init__(self):
        self.lines = []
        self.vq = []
    def e(self, s):
        self.lines.append("  " + s)
    def label(self, s):
        self.lines.append(s + ":")
    def c(self, s):
        self.lines.append("  ; " + s)
    def vm(self, s, tag):
        self.e(s)
        self.vq.append(tag)
    def vmn(self, tags):
        last = -1
        for i, t in enumerate(self.vq):
            if t in tags:
                last = i
        if last < 0:
            return None
        n = len(self.vq) - 1 - last
        self.vq = self.vq[last + 1:]
        return min(n, 63)
    def wait(self, tags=(), lgkm=None, vm0=False):
        n = self.vmn(tags) if tags else None
        if vm0:
            n = 0
            self.vq = []
        s = "s_waitcnt"
        if n is not None:
            s += f" vmcnt({n})"
        if lgkm is not None:
            s += f" lgkmcnt({lgkm})"
        if s != "s_waitcnt":
            self.e(s)
    def weave(self, mf, fill):
        for i, m in enumerate(mf):
            self.e(m)
            for (s, tag) in fill.get(i, []):
                self.item(s, tag)
    def item(self, s, tag):
        if s == "WAIT":
            self.wait(tag)
        elif tag is None:
            self.e(s)
        else:
            self.vm(s, tag)

def v(i, n=1):
    return f"v{i}" if n == 1 else f"v[{i}:{i+n-1}]"
def a(i, n=1):
    return f"a{i}" if n == 1 else f"a[{i}:{i+n-1}]"
MF = "v_mfma_f32_16x16x32_bf16"

OWS = 0
WOT = 320 * 128 * 1024
WS_USED = WOT + 36 * 128 * 1024
if OPT["prof"]: WS_USED = 0x5000000
sPf = 78
OOB = 0x7F000000

vKd = 1; vVd = 5; vWd = 7; vXo = 11; vKa = 12; vVa = 16; vWa = 24; vOo = 28; vWoL = 29
vT = 30
vQ = 36; vX = 36; vAcc = 92
vKf = 116; vS = 180; vP = 196; vC = 216; vE = 236
aO = 0; aVf = 160; aWf = 160; aL = 224; aOne = 244
L_W = [0, 8192, 16384]
L_X = 24576
sXm = 47; sWarm = 49
vXr = 252
sM4 = 79; sQh = 80; sHs = 81; HB = 81920
L_V = [24576, 32768, 40960, 16384]
L_K0 = 49152
sX, sK, sV, sWQ, sWS, sWO = 8, 12, 16, 20, 24, 28
sW4 = 32; sU = 33; sKb = 34; sKn = 35; sWb = 36; sXq = 37; sOb = 42; sWoG = 43; sWoS = 45
sJob = 46; sScale = 48; sT0 = 50; sT1 = 51; sWn = 52; sFlag = 53; sU0 = 54; sWave = 55; sSlow = 56; sThr = 57
sT2 = 58; sT3 = 59
NT = {0: "", 1: " nt", 2: " sc0 sc1", 3: " sc1", 4: " sc0 sc1 nt", 5: " sc1 nt", 6: " sc0 nt"}[OPT["nt"]]
NTW = " nt" if OPT["ntw"] else ""
FL = {0: "", 1: " nt", 2: " sc0 sc1", 3: " sc1", 4: " sc0 sc1 nt", 5: " sc1 nt", 6: " sc0 nt"}
OSTF = FL[OPT["ost"]]; OSTF_OLD = ""

def mark(A, t0=30, srd=24, real=False, lvl=1):
    if not OPT["prof"]: return
    if not real and srd == 24 and OPT["prof"] != lvl: return
    A.e("s_memrealtime s[76:77]" if real else "s_memtime s[76:77]")
    A.e("s_waitcnt lgkmcnt(0)")
    A.e(f"v_mov_b32 v{t0}, s76")
    A.e(f"v_mov_b32 v{t0+1}, s77")
    A.e(f"v_mov_b32 v{t0+2}, 0")
    A.vm(f"buffer_store_dwordx2 v[{t0}:{t0+1}], v{t0+2}, s[{srd}:{srd+3}], s{sPf} offen", "PF")
    A.e(f"s_add_u32 s{sPf}, s{sPf}, 8")

def dma_kv(kind, jj, pieces=(0, 1, 2, 3)):
    base = sKb if jj < 16 else sKn
    j = jj % 16
    slot = (L_K0 + 8192 * (jj % 4)) if kind == "K" else L_V[jj % 4]
    out = [(f"s_add_u32 m0, s{sM4}, {slot}", None),
           (f"s_add_u32 s{sT0}, s{base}, {j*8192}", None)]
    for pp in pieces:
        vo = vKd + pp if kind == "K" else vVd + (pp & 1)
        r = sK if kind == "K" else sV
        if OPT["nokv"]: out.append(("s_nop 0", None)); continue
        out.append((f"buffer_load_dwordx4 v{vo}, s[{r}:{r+3}], s{sT0} offen offset:{pp*1024}{NT} lds", f"{kind}{jj}"))
    return out

PARK = {("V",0): 40, ("V",1): 56, ("V",2): 72, ("V",3): 88, ("K",4): 112, ("K",5): 128, ("V",4): 144}
vPk = 87
def park_ld(kind, jj):
    out = [("s_nop 0", None), (f"s_add_u32 s{sT0}, s{sKb}, {jj*8192}", None)]
    for pp in range(4):
        vo = vKd + pp if kind == "K" else vVd + (pp & 1)
        r = sK if kind == "K" else sV
        out.append((f"buffer_load_dwordx4 {a(PARK[(kind,jj)] + 4*pp, 4)}, v{vo}, s[{r}:{r+3}], s{sT0} offen offset:{pp*1024}{NT}", "PK" if OPT["vreg"] < 3 else f"P{kind}{jj}"))
    return out
def park_wr(kind, jj, vb):
    slot = (L_K0 + 8192 * (jj % 4)) if kind == "K" else L_V[jj % 4]
    return [(f"ds_write_b128 v{vb}, {a(PARK[(kind,jj)] + 4*pp, 4)} offset:{slot + pp*1024}", None) for pp in range(4)]

def dma_w(t, nxt=False, slot=None):
    base = sWn if nxt else sWb
    out = [(f"s_add_u32 m0, s{sM4}, {L_W[t%3] if slot is None else slot}", None),
           (f"s_add_u32 s{sT1}, s{base}, {(t*8192 if OPT['wlin']==3 else 0) if OPT['wlin'] else t*262144}", None)]
    for pp in range(4):
        if OPT["nowd"]: out.append(("s_nop 0", None)); continue
        out.append((f"buffer_load_dwordx4 v{vWd+pp}, s[{sWQ}:{sWQ+3}], s{sT1} offen offset:{pp*1024}{NTW} lds", f"W{t}"))
    return out

NTX = " nt" if OPT["ntx"] else ""
def xfrag(t, qt):
    o = 8*qt + 4*(t % 2)
    return v(36 + o, 4) if (t//2) % 2 == 0 else a(o, 4)
def ld_x(p, qt):
    po = 0 if OPT["xlin"] else 128*p
    return [(f"s_add_u32 m0, s{sXm}, {(p%2)*HB + qt*2048}", None), (f"s_add_u32 s{sT1}, s{sXq+qt}, {po}", None),
            (f"buffer_load_dwordx4 v{vXo}, s[{sX}:{sX+3}], s{sT1} offen{NTX} lds", f"X{p}")]
def rd_x(p):
    return [(f"ds_read_b128 {xfrag(2*p+ks, qt)}, v{vXr + 2*(p%2) + ks} offset:{qt*2048}", None) for ks in range(2) for qt in range(5)]

def rd_w(t, slot):
    out = []
    for T in range(8):
        for hb in range(2):
            out.append((f"ds_read_b64_tr_b16 {a(aWf + 32*(t%2) + 4*T + 2*hb, 2)}, v{(vWa if slot < L_K0 else 88) + T//2} offset:{slot % L_K0 + 8*(T%2) + 1024*hb}", None))
    return out

def rd_k(j):
    return [(f"ds_read_b128 {v(vKf + 32*(j%2) + 16*aa + 4*t, 4)}, v{vKa+t} offset:{8192*(j%4) + 4096*aa}", None)
            for aa in range(2) for t in range(4)]

def rd_v(j):
    return [(f"ds_read_b64_tr_b16 {a(aVf + 32*(j%2) + 4*T + 2*hb, 2)}, v{vVa+T} offset:{L_V[j%4] + 4096*hb}", None)
            for T in range(8) for hb in range(2)]

def spread(fill, items, slots):
    for k, grp in enumerate(items):
        fill.setdefault(slots[k], []).extend(grp)

def emit_list(A, lst):
    for s, tag in lst:
        A.item(s, tag)

def qproj(A, cold):
    A.c("---- Q-proj " + ("cold" if cold else "warm"))
    N = 18
    deep = cold and OPT["deep"]
    R7 = L_W + [L_K0 + 8192*i for i in range(4)]
    def wsl(t):
        if not deep: return L_W[t % 3]
        if t == N - 1: return L_W[0]
        return R7[t % 7]
    wiss = {}
    for t in range(3, N):
        if not deep: st = t - 3
        elif t == N - 1: st = N - 4
        else: st = max((t - 3)//2, t - 5)
        wiss.setdefault(st, []).append(t)
    kiss = {N-8+j: j for j in range(4)} if deep else ({3+2*j: j for j in range(4)} if (cold and OPT["kl"]) else {})
    if deep:
        for i in range(4): A.e(f"v_add_u32 v{88+i}, {L_K0}, v{vWa+i}")
    piss = {}
    if OPT["vreg"]:
        assert not deep
        ext = [("K",4), ("K",5), ("V",4)] if OPT["vreg"] == 2 else []
        if cold:
            seq = [("K",0), ("K",1), ("V",0), ("K",2), ("V",1), ("K",3), ("V",2), ("V",3)] + ext
            kiss = {OPT["cst"]+i: x[1] for i, x in enumerate(seq) if x not in PARK}
            piss = {OPT["cst"]+i: x for i, x in enumerate(seq) if x in PARK}
        else:
            piss = {OPT["vst"]+i: x for i, x in enumerate([("V",j) for j in range(4)] + ext)}
        if OPT["vreg"] == 3:
            T7 = [("V",0), ("V",1), ("V",2), ("V",3), ("K",4), ("K",5), ("V",4)]
            CS = [[3,5,7,9, 11,13,14,15,16,17,17], [3,5,7,9, 14,14,15,15,16,16,17], [2,4,6,8, 10,12,14,14,15,15,16]][OPT["cs"]]
            WS = [[5,8,11,14,15,16,17], [14,14,15,15,16,16,17], [4,7,10,13,14,14,15], [6,10,14,14,15,15,16]][OPT["wsn"]]
            piss = {}
            if cold: kiss = {CS[j]: j for j in range(4)}
            for st, x in zip(CS[4:] if cold else WS, T7): piss.setdefault(st, []).append(x)
        else:
            assert max(piss) <= 13
            piss = {k: [x] for k, x in piss.items()}
        A.e(f"v_add_u32 v{vPk}, s{sM4}, v{vOo}")
    if cold:
        for qt in range(5): emit_list(A, ld_x(0, qt))
        emit_list(A, dma_w(0))
        if OPT["warm"]:
            ntw = " nt" if OPT["ntwarm"] else ""
            for i in range(5):
                if i < 3: A.vm(f"buffer_load_dword v76, v{vE+2+i}, s[{sX}:{sX+3}], s{sWarm} offen{ntw}", "WU")
                A.e(f"s_add_u32 s{sT1}, s{sThr}, {i*1048576}")
                A.vm(f"buffer_load_dword v77, v{vE+5}, s[{sWQ}:{sWQ+3}], s{sT1} offen{ntw}", "WU")
        emit_list(A, dma_w(1))
        for qt in range(5): emit_list(A, ld_x(1, qt))
        emit_list(A, dma_w(2))
        if not kiss:
            for jj in range(4): emit_list(A, dma_kv("K", jj))
    ml = 3 if cold else 2
    mark(A, lvl=ml)
    A.wait(["W0", "X0"])
    A.e("s_barrier")
    emit_list(A, rd_w(0, wsl(0)))
    emit_list(A, rd_x(0))
    for t in range(18):
        A.wait([f"W{t+1}"] + ([f"X{t//2+1}"] if t % 2 else []) + (["PK"] if t == 16 else []), lgkm=0)
        A.e("s_barrier")
        if t % 2 == 0: mark(A, lvl=ml)
        mf = []
        for T in range(8):
            for qt in range(5):
                f = (T//2)*5 + qt
                d = v(vAcc + 8*f + 4*(T%2), 4)
                mf.append(f"{MF} {d}, {a(aWf + 32*(t%2) + 4*T, 4)}, {xfrag(t, qt)}, {'0' if t == 0 else d}")
        fill = {}
        groups = []
        p = t//2 + 2
        if p <= 8:
            for qt in ((0, 1, 2) if t % 2 == 0 else (3, 4)): groups.append(ld_x(p, qt))
        ws_ = [dma_w(x, slot=wsl(x)) for x in wiss.get(t, [])]
        if t in kiss: ws_.append(dma_kv("K", kiss[t]))
        for x in piss.get(t, []): ws_.append(park_ld(*x))
        for w in ws_:
            groups += [w[0:3], [w[3]], [w[4]], [w[5]]]
        for vj in ({16: (0,), 17: (1,)} if (OPT["vs"] and not OPT["vreg"]) else {16: (0, 1, 2), 17: (3,)}).get(t, ()):
            if OPT["vreg"] == 3: continue
            if OPT["vreg"]:
                groups += [[x] for x in park_wr("V", vj, vPk)]
                continue
            w = dma_kv("V", vj)
            groups += [w[0:3], [w[3]], [w[4]], [w[5]]]
        rds = [[r] for r in rd_w(t+1, wsl(t+1))] if t + 1 <= 17 else []
        if t % 2 == 1 and t//2 + 1 <= 8:
            xr = [[r] for r in rd_x(t//2 + 1)]
            spread(fill, xr, list(range(3, 33, 3)))
        spread(fill, rds, list(range(0, 32, 2)))
        spread(fill, groups, list(range(1, 40, 3)) if len(groups) > 7 else list(range(1, 36, 5)))
        A.weave(mf, fill)
    if OPT["vreg"] == 3:
        A.wait(["PV0"])
        emit_list(A, park_wr("V", 0, vPk))
    mark(A, lvl=ml)
    A.e("s_nop 7")
    for f in range(20):
        b = vAcc + 8*f
        for i in range(8):
            A.e(f"v_mul_f32 v{b+i}, s{sScale}, v{b+i}")
        for i in range(4):
            A.e(f"v_cvt_pk_bf16_f32 v{vQ+4*f+i}, v{b+2*i}, v{b+2*i+1}")
    mark(A, lvl=ml)

def qk_mf(j, qt, sb, czero=False):
    mf = []
    for t in range(4):
        for aa in range(2):
            d = v(vS + 8*sb + 4*aa, 4)
            c = d if t > 0 else ("0" if czero else v(vC + 4*qt, 4))
            mf.append(f"{MF} {d}, {v(vKf + 32*(j%2) + 16*aa + 4*t, 4)}, {v(vQ + 4*(t*5+qt), 4)}, {c}")
    return mf

def pv_mf(j, qt):
    mf = []
    for T in range(8):
        d = a(aO + 32*qt + 4*T, 4)
        mf.append(f"{MF} {d}, {a(aVf + 32*(j%2) + 4*T, 4)}, {v(vP + 4*qt, 4)}, {'0' if j == 0 else d}")
    d = a(aL + 4*qt, 4)
    mf.append(f"{MF} {d}, {a(aOne, 4)}, {v(vP + 4*qt, 4)}, {'0' if j == 0 else d}")
    return mf

def softmax_ops(sb, qt):
    s = vS + 8*sb
    ex = [[(f"v_exp_f32 v{s+i}, v{s+i}", None)] for i in range(8)]
    cv = [(f"v_cvt_pk_bf16_f32 v{vP+4*qt+i}, v{s+2*i}, v{s+2*i+1}", None) for i in range(4)]
    return ex, cv

def lane_max(A, m, t):
    A.e(f"v_mov_b32 v{t}, v{m}")
    A.e("s_nop 1")
    A.e(f"v_permlane32_swap_b32 v{t}, v{m}")
    A.e("s_nop 1")
    A.e(f"v_max_f32 v{m}, v{t}, v{m}")
    A.e(f"v_mov_b32 v{t}, v{m}")
    A.e("s_nop 1")
    A.e(f"v_permlane16_swap_b32 v{t}, v{m}")
    A.e("s_nop 1")
    A.e(f"v_max_f32 v{m}, v{t}, v{m}")

def maxpass(A):
    A.c("---- max pass (fallback)")
    for qt in range(5):
        A.e(f"v_mov_b32 v{vE+qt}, 0xff800000")
    A.e(f"s_mov_b32 s{sT2}, s{sKb}")
    A.e(f"s_add_u32 s{sT3}, s{sKb}, 131072")
    A.label("L_maxloop")
    A.e("s_barrier")
    A.e(f"s_add_u32 m0, s{sM4}, {L_W[0]}")
    A.e("s_nop 0")
    for pp in range(4):
        A.e(f"buffer_load_dwordx4 v{vKd+pp}, s[{sK}:{sK+3}], s{sT2} offen offset:{pp*1024} lds")
    A.e("s_waitcnt vmcnt(0)")
    A.e("s_barrier")
    for t in range(4):
        A.e(f"v_subrev_u32 v{vT+t}, {L_K0}, v{vKa+t}")
    for aa in range(2):
        for t in range(4):
            A.e(f"ds_read_b128 {v(vKf + 16*aa + 4*t, 4)}, v{vT+t} offset:{L_W[0] + 4096*aa}")
    A.e("s_waitcnt lgkmcnt(0)")
    for qt in range(5):
        for m in qk_mf(0, qt, 0, czero=True): A.e(m)
        A.e("s_nop 7")
        s = vS
        for i in range(4):
            A.e(f"v_max3_f32 v{vE+qt}, v{s+2*i}, v{s+2*i+1}, v{vE+qt}")
        A.e("s_nop 3")
    A.e(f"s_add_u32 s{sT2}, s{sT2}, 8192")
    A.e(f"s_cmp_lt_u32 s{sT2}, s{sT3}")
    A.e("s_cbranch_scc1 L_maxloop")
    for qt in range(5):
        lane_max(A, vE+qt, vT)
        for i in range(4):
            A.e(f"v_sub_f32 v{vC+4*qt+i}, 0, v{vE+qt}")
    A.e("s_barrier")

def attention(A):
    A.c("---- attention prologue")
    A.vq = [f"V{j}" for j in range(2 if OPT["vs"] else 4) for _ in range(4)] if not OPT["vreg"] else []
    if OPT["vreg"] == 3: A.vq = ["PV"] + ["PE"]*12
    mark(A)
    if OPT["vs"] and not OPT["vreg"]: emit_list(A, dma_kv("V", 2))
    A.e(f"s_cmp_eq_u32 s{sSlow}, 0")
    A.e("s_cbranch_scc1 L_nomax")
    maxpass(A)
    A.label("L_nomax")
    emit_list(A, rd_k(0))
    emit_list(A, rd_k(1))
    A.wait(lgkm=8)
    for m in qk_mf(0, 0, 1, czero=True): A.e(m)
    for qt in range(5):
        sb = (qt + 1) % 2
        s = vS + 8*sb
        if qt == 2 and OPT["vs"] and not OPT["vreg"]: emit_list(A, dma_kv("V", 3))
        if qt < 4:
            for m in qk_mf(0, qt+1, qt % 2, czero=True): A.e(m)
        else:
            A.wait(["V0"])
            A.e("s_barrier")
            emit_list(A, rd_v(0))
            if OPT["vreg"] == 3:
                A.e(f"v_add_u32 v{vT+4}, s{sM4}, v{vOo}")
                A.wait(["PV"])
                for vj in (1, 2, 3): emit_list(A, park_wr("V", vj, vT+4))
        m = vT; t = vT + 1
        A.e(f"v_max3_f32 v{m}, v{s}, v{s+1}, v{s+2}")
        A.e(f"v_max3_f32 v{m}, v{s+3}, v{s+4}, v{m}")
        A.e(f"v_max3_f32 v{m}, v{s+5}, v{s+6}, v{m}")
        A.e(f"v_max_f32 v{m}, v{s+7}, v{m}")
        lane_max(A, m, t)
        A.e(f"v_sub_f32 v{m}, 0, v{m}")
        for i in range(4):
            A.e(f"v_cndmask_b32 v{vC+4*qt+i}, v{m}, v{vC+4*qt+i}, s[60:61]")
        for i in range(8):
            A.e(f"v_add_f32 v{s+i}, v{s+i}, v{vC+4*qt}")
        if qt < 4:
            ex, cv = softmax_ops(sb, qt)
            for g in ex: emit_list(A, g)
            A.e("s_nop 0")
            emit_list(A, cv)
    mark(A)
    for j in range(16):
        A.c(f"---- iter {j}")
        A.wait([f"K{j+2}", f"V{j+1}"] if j < 15 else [], lgkm=0)
        A.e("s_barrier")
        vmg = []
        def addkv(kind, jj):
            kv = dma_kv(kind, jj)
            vmg.extend([kv[0:3], [kv[3]], [kv[4]], [kv[5]]])
        if j >= 14:
            for qt in range(5): vmg.append(ld_x(j - 14, qt))
        if j == 0 and OPT["vreg"] == 2:
            A.e(f"v_add_u32 v{vT+4}, s{sM4}, v{vOo}")
            for x in (("K",4), ("K",5), ("V",4)): emit_list(A, park_wr(*x, vT+4))
        elif not (j == 0 and OPT["vreg"] == 3):
            if j == 0: addkv("K", 4)
            if j + 5 <= 19: addkv("K", j+5)
            if j + 4 <= 15: addkv("V", j+4)
        wt = {12: 0, 13: 1, 15: 2}.get(j)
        if wt is not None:
            w = dma_w(wt, nxt=True)
            vmg.extend([w[0:3], [w[3]], [w[4]], [w[5]]])
        if j == 14:
            for i in range(3):
                for e8 in range(8):
                    vmg.append([(f"buffer_load_ushort v{vKf + 8*i + e8}, v{vWoL}, s[{sWO}:{sWO+3}], s{sWoG + e8//4} offen offset:{(e8%4)*1152 + 32*i}", "G")])

        rds = []
        if j + 2 <= 15: rds += [[r] for r in rd_k(j+2)]
        if j + 1 <= 15: rds += [[r] for r in rd_v(j+1)]
        others = []
        i1 = i2 = 0
        while i1 < len(vmg) or i2 < len(rds):
            if i2 < len(rds): others.append(rds[i2]); i2 += 1
            if i1 < len(vmg): others.append(vmg[i1]); i1 += 1
        for qt in range(5):
            n = 5*j + qt
            if j == 0 and qt == 2 and OPT["vreg"] == 3:
                A.wait(["PE"])
                for x in (("K",4), ("K",5), ("V",4)): emit_list(A, park_wr(*x, vT+4))
            mf = (qk_mf(j+1, qt, n % 2) if j < 15 else []) + pv_mf(j, qt)
            fill = {}
            nm = len(mf)
            do_sm = (j < 15) or qt == 0
            free = list(range(nm))
            if do_sm:
                ex, cv = softmax_ops((n-1) % 2, (qt - 1) % 5)
                if nm == 17:
                    exs = [0, 2, 4, 6, 8, 10, 12, 13]; cvs = [14, 15]
                else:
                    exs = [0, 1, 2, 3, 4, 5, 6, 7]; cvs = [8, 8]
                spread(fill, ex, exs)
                if cvs[0] == 8: fill.setdefault(8, [])
                fill.setdefault(cvs[0], []).extend(cv[0:2])
                fill.setdefault(cvs[1], []).extend(cv[2:4])
                free = [s for s in range(nm) if s not in exs and s not in cvs]
                if not free: free = [8]
            rem = 5 - qt
            k = -(-len(others) // rem) if qt < 4 else len(others)
            k = max(k, min(len(others), len(free)))
            take, others = others[:k], others[k:]
            for idx, g in enumerate(take):
                fill.setdefault(free[idx % len(free)] if len(take) <= len(free) else free[idx * len(free) // len(take)], []).extend(g)
            A.weave(mf, fill)
    A.c("---- epilogue")
    mark(A)
    A.e("s_nop 7")
    A.e("s_mov_b64 s[62:63], 0")
    for qt in range(5):
        A.e(f"v_accvgpr_read_b32 v{vC+qt}, a{aL+4*qt}")
    for qt in range(5):
        A.e(f"v_cmp_nlt_f32 vcc, v{vC+qt}, v{vT+5}")
        A.e(f"v_rcp_f32 v{vC+qt}, v{vC+qt}")
        A.e("s_or_b64 s[62:63], s[62:63], vcc")
    k = 0
    for qt in range(5):
        for jp in range(4):
            tb = [vS, vS+8, vP, vP+8][k % 4]
            ob = vE + 4*(k % 4)
            k += 1
            for i in range(8):
                A.e(f"v_accvgpr_read_b32 v{tb+i}, a{aO + 32*qt + 8*jp + i}")
            for i in range(8):
                A.e(f"v_mul_f32 v{tb+i}, v{tb+i}, v{vC+qt}")
            for i in range(4):
                A.e(f"v_cvt_pk_bf16_f32 v{ob+i}, v{tb+2*i}, v{tb+2*i+1}")
            if jp == 0:
                A.e(f"s_add_u32 s{sT0}, s{sOb}, {qt*131072}")
            A.vm(f"buffer_store_dwordx4 {v(ob,4)}, v{vOo}, s[{sWS}:{sWS+3}], s{sT0} offen offset:{jp*1024}{OSTF}", "ST")
    A.wait(["G"])
    for i in range(3):
        for p in range(4):
            A.e(f"v_lshl_or_b32 v{vKf+32+4*i+p}, v{vKf+8*i+2*p+1}, 16, v{vKf+8*i+2*p}")
        A.e(f"s_add_u32 s{sT0}, s{sWoS}, {i*131072}")
        A.vm(f"buffer_store_dwordx4 {v(vKf+32+4*i,4)}, v{vOo}, s[{sWS}:{sWS+3}], s{sT0} offen{FL[OPT['wst']]}", "ST")
    mark(A)

def unit_setup(A):
    A.e(f"s_lshl_b32 s{sKb}, s{sU}, 17")
    A.e(f"s_xor_b32 s{sKn}, s{sKb}, 262144")
    A.e(f"s_and_b32 s{sT0}, s{sU}, 31")
    A.e(f"s_lshl_b32 s{sWb}, s{sT0}, 8")
    A.e(f"s_xor_b32 s{sWn}, s{sWb}, 512")
    if OPT["wlin"] == 3:
        A.e(f"s_mul_i32 s{sWb}, s{sWb}, 576")
        A.e(f"s_mul_i32 s{sWn}, s{sWn}, 576")
    A.e(f"s_cmp_eq_u32 s{sJob}, 0")
    A.e(f"s_cselect_b32 s{sKn}, s{sKn}, {OOB}")
    A.e(f"s_cselect_b32 s{sWn}, s{sWn}, {OOB}")
    A.e(f"s_lshr_b32 s{sT1}, s{sU}, 5")
    A.e(f"s_mul_i32 s{sT1}, s{sT1}, 10")
    A.e(f"s_mul_i32 s{sT2}, s{sQh}, 5")
    A.e(f"s_add_u32 s{sT1}, s{sT1}, s{sT2}")
    A.e(f"s_lshl_b32 s{sT1}, s{sT1}, 17")
    A.e(f"s_lshl_b32 s{sT0}, s{sT0}, 12")
    A.e(f"s_add_u32 s{sOb}, s{sT1}, s{sT0}")
    A.e(f"s_lshl_b32 s{sT0}, s{sU}, 1")
    A.e(f"s_add_u32 s{sT0}, s{sT0}, s{sQh}")
    A.e(f"s_lshr_b32 s{sT1}, s{sT0}, 4")
    A.e(f"s_and_b32 s{sT0}, s{sT0}, 15")
    A.e(f"s_mul_i32 s{sT2}, s{sT1}, {32*1152}")
    A.e(f"s_mul_i32 s{sT3}, s{sT0}, 96")
    A.e(f"s_add_u32 s{sWoG}, s{sT2}, s{sT3}")
    A.e(f"s_add_u32 s{sWoG+1}, s{sWoG}, {16*1152}")
    A.e(f"s_mul_i32 s{sT2}, s{sT0}, {3*131072}")
    A.e(f"s_lshl_b32 s{sT3}, s{sT1}, 10")
    A.e(f"s_add_u32 s{sT2}, s{sT2}, s{sT3}")
    A.e(f"s_add_u32 s{sWoS}, s{sT2}, {WOT}")
    A.e(f"s_cmp_lt_u32 s{sT0}, 12")
    A.e(f"s_cselect_b32 s{sWoG}, s{sWoG}, {OOB}")
    A.e(f"s_cselect_b32 s{sWoG+1}, s{sWoG+1}, {OOB}")
    A.e(f"s_cselect_b32 s{sWoS}, s{sWoS}, {OOB}")
    A.e(f"s_cmp_lg_u32 s{sSlow}, 0")
    A.e("s_cselect_b64 s[60:61], -1, 0")

def mk_srd(A, s, p, nbytes):
    A.e(f"s_mov_b32 s{s}, s{p}")
    A.e(f"s_and_b32 s{s+1}, s{p+1}, 0xffff")
    A.e(f"s_mov_b32 s{s+2}, {nbytes}")
    A.e(f"s_mov_b32 s{s+3}, 0x00020000")

def kernel_a(A):
    A.lines.append(".p2align 8")
    A.label("attn_kernel")
    A.e("s_cmp_ge_u32 s2, 256")
    A.e("s_cbranch_scc1 L_a_done")
    A.e("s_load_dwordx8 s[64:71], s[0:1], 0")
    A.e("s_load_dwordx2 s[72:73], s[0:1], 32")
    A.e("s_load_dwordx2 s[74:75], s[0:1], 56")
    L, g, q, r, c = vT, vT+1, vT+2, vT+3, vT+4
    A.e(f"v_lshrrev_b32 v{g}, 6, v0")
    A.e(f"v_and_b32 v{L}, 63, v0")
    A.e("s_nop 0")
    A.e(f"v_readfirstlane_b32 s{sWave}, v{g}")
    A.e(f"v_lshrrev_b32 v{g}, 4, v{L}")
    A.e(f"v_and_b32 v{q}, 15, v{L}")
    A.e(f"v_lshrrev_b32 v{r}, 2, v{q}")
    A.e(f"v_and_b32 v{c}, 3, v{L}")
    A.e(f"s_and_b32 s{sQh}, s{sWave}, 1")
    A.e(f"s_lshr_b32 s{sHs}, s{sWave}, 1")
    A.e(f"s_lshl_b32 s{sW4}, s{sQh}, 12")
    A.e(f"s_mul_i32 s{sT3}, s{sHs}, {HB}")
    A.e(f"s_add_u32 s{sM4}, s{sW4}, s{sT3}")
    t0, t1 = vE, vE+1
    for pp in range(4):
        A.e(f"v_add_u32 v{t0}, {4*pp}, v{g}")
        A.e(f"v_xor_b32 v{t0}, v{t0}, v{q}")
        A.e(f"v_lshlrev_b32 v{t0}, 4, v{t0}")
        A.e(f"v_lshl_add_u32 v{t0}, v{g}, 8, v{t0}")
        A.e(f"v_add_u32 v{vKd+pp}, s{sW4}, v{t0}")
    for p1 in range(2):
        A.e(f"v_add_u32 v{t0}, {4*p1}, v{g}")
        A.e(f"v_lshlrev_b32 v{t0}, 1, v{t0}")
        A.e(f"v_xor_b32 v{t0}, v{t0}, v{q}")
        A.e(f"v_lshlrev_b32 v{t0}, 4, v{t0}")
        A.e(f"v_lshl_add_u32 v{t0}, v{g}, 8, v{t0}")
        A.e(f"v_add_u32 v{vVd+p1}, s{sW4}, v{t0}")
    A.e(f"s_lshl_b32 s{sT0}, s{sQh}, 17")
    for pp in range(4):
        A.e(f"v_lshlrev_b32 v{t0}, 2, v{g}")
        A.e(f"v_xor_b32 v{t0}, v{t0}, v{q}")
        A.e(f"v_lshlrev_b32 v{t0}, 4, v{t0}")
        A.e(f"v_lshl_add_u32 v{t0}, v{g}, 13, v{t0}")
        A.e(f"v_add_u32 v{t0}, {pp*32768 - pp*1024}, v{t0}")
        A.e(f"v_add_u32 v{vWd+pp}, s{sT0}, v{t0}")
        if OPT["wlin"] == 2: A.e(f"v_lshlrev_b32 v{vWd+pp}, 4, v{L}")
        if OPT["wlin"] == 3:
            A.e(f"v_lshlrev_b32 v{vWd+pp}, 4, v{L}")
            A.e(f"v_add_u32 v{vWd+pp}, s{sW4}, v{vWd+pp}")
    A.e(f"s_mul_i32 s{sT0}, s{sQh}, {80*1152}")
    A.e(f"s_mul_i32 s{sT1}, s{sHs}, {8*1152}")
    A.e(f"s_add_u32 s{sT0}, s{sT0}, s{sT1}")
    A.e(f"v_lshrrev_b32 v{t1}, 3, v{L}")
    A.e(f"v_mul_u32_u24 v{t0}, 1152, v{t1}")
    A.e(f"v_and_b32 v{vXo}, 7, v{L}")
    A.e(f"v_xor_b32 v{vXo}, v{vXo}, v{t1}")
    A.e(f"v_lshl_add_u32 v{t0}, v{vXo}, 4, v{t0}")
    A.e(f"v_add_u32 v{vXo}, s{sT0}, v{t0}")
    A.e(f"s_mul_i32 s{sXm}, s{sQh}, 10240")
    A.e(f"s_add_u32 s{sXm}, s{sXm}, {L_X}")
    A.e(f"v_and_b32 v{t0}, 7, v{q}")
    A.e(f"v_xor_b32 v{t0}, v{t0}, v{g}")
    A.e(f"v_lshlrev_b32 v{t0}, 4, v{t0}")
    A.e(f"v_lshl_add_u32 v{t0}, v{q}, 7, v{t0}")
    A.e(f"v_add_u32 v{vXr}, s{sXm}, v{t0}")
    A.e(f"v_xor_b32 v{vXr+1}, 64, v{vXr}")
    A.e(f"v_add_u32 v{vXr+2}, {HB}, v{vXr}")
    A.e(f"v_add_u32 v{vXr+3}, {HB}, v{vXr+1}")
    A.e(f"s_lshl_b32 s{sT1}, s{sHs}, 10")
    A.e(f"s_add_u32 s{sXm}, s{sXm}, s{sT1}")
    A.e(f"s_lshr_b32 s{sT0}, s2, 3")
    A.e(f"s_lshl_b32 s{sT0}, s{sT0}, 2")
    A.e(f"s_add_u32 s{sT0}, s{sT0}, s{sWave}")
    A.e(f"s_mul_i32 s{sWarm}, s{sT0}, 11520")
    A.e(f"s_bfe_u32 s{sT1}, s2, 0x20001")
    A.e(f"s_mul_i32 s{sT1}, s{sT1}, {8*184320}")
    A.e(f"s_add_u32 s{sWarm}, s{sWarm}, s{sT1}")
    A.e(f"s_lshr_b32 s{sThr}, s{sT0}, 1")
    A.e(f"s_lshl_b32 s{sThr}, s{sThr}, 13")
    A.e(f"s_and_b32 s{sT1}, s2, 1")
    A.e(f"s_lshl_b32 s{sT1}, s{sT1}, 12")
    A.e(f"s_add_u32 s{sThr}, s{sThr}, s{sT1}")
    A.e(f"s_lshl_b32 s{sT1}, s{sQh}, 11")
    A.e(f"s_add_u32 s{sThr}, s{sThr}, s{sT1}")
    for t in range(4):
        A.e(f"v_add_u32 v{t0}, {4*t}, v{g}")
        A.e(f"v_xor_b32 v{t0}, v{t0}, v{q}")
        A.e(f"v_lshlrev_b32 v{t0}, 4, v{t0}")
        A.e(f"v_lshl_add_u32 v{t0}, v{q}, 8, v{t0}")
        A.e(f"v_add_u32 v{t0}, {L_K0}, v{t0}")
        A.e(f"v_add_u32 v{vKa+t}, s{sT3}, v{t0}")
    A.e(f"v_and_b32 v{t1}, 1, v{g}")
    A.e(f"v_lshl_add_u32 v{t1}, v{t1}, 2, v{r}")
    A.e(f"v_lshlrev_b32 v{t1}, 1, v{t1}")
    for T in range(8):
        A.e(f"v_lshrrev_b32 v{t0}, 1, v{c}")
        A.e(f"v_add_u32 v{t0}, {2*T}, v{t0}")
        A.e(f"v_xor_b32 v{t0}, v{t0}, v{t1}")
        A.e(f"v_lshlrev_b32 v{t0}, 4, v{t0}")
        A.e(f"v_lshl_add_u32 v{vVa+T}, v{g}, 2, v{r}")
        A.e(f"v_lshl_add_u32 v{t0}, v{vVa+T}, 8, v{t0}")
        A.e(f"v_and_b32 v{vVa+T}, 1, v{c}")
        A.e(f"v_lshl_add_u32 v{vVa+T}, v{vVa+T}, 3, v{t0}")
        A.e(f"v_add_u32 v{vVa+T}, s{sT3}, v{vVa+T}")
    for tt in range(4):
        A.e(f"v_xor_b32 v{t0}, {tt}, v{r}")
        A.e(f"v_lshl_add_u32 v{t0}, v{t0}, 2, v{c}")
        A.e(f"v_lshlrev_b32 v{t0}, 4, v{t0}")
        A.e(f"v_lshl_add_u32 v{t1}, v{g}, 3, v{r}")
        A.e(f"v_lshl_add_u32 v{vWa+tt}, v{t1}, 8, v{t0}")
        A.e(f"v_add_u32 v{vWa+tt}, s{sT3}, v{vWa+tt}")
    A.e(f"v_lshlrev_b32 v{vOo}, 4, v{L}")
    A.e(f"v_mul_u32_u24 v{t0}, {4*1152}, v{g}")
    A.e(f"v_lshl_add_u32 v{vWoL}, v{q}, 1, v{t0}")
    A.e(f"v_mov_b32 v{t0}, 0x3f803f80")
    for i in range(4):
        A.e(f"v_accvgpr_write_b32 a{aOne+i}, v{t0}")
    A.e(f"v_mov_b32 v{vT+5}, {f32bits(2.0**OPT['thr_log2'])}")
    A.e(f"s_mov_b32 s{sScale}, {f32bits(math.log2(math.e)/math.sqrt(128.0))}")
    A.e(f"s_bfe_u32 s{sT2}, s2, 0x20001")
    A.e(f"s_lshl_b32 s{sT2}, s{sT2}, 3")
    A.e(f"s_bfe_u32 s{sT3}, s2, 0x30003")
    A.e(f"s_add_u32 s{sT2}, s{sT2}, s{sT3}")
    A.e(f"s_and_b32 s{sT0}, s2, 1")
    A.e(f"s_lshl_b32 s{sT0}, s{sT0}, 2")
    A.e(f"s_lshr_b32 s{sT1}, s2, 6")
    A.e(f"s_add_u32 s{sT0}, s{sT0}, s{sT1}")
    A.e(f"s_lshl_b32 s{sU0}, s{sT2}, 5")
    A.e(f"s_lshl_b32 s{sT0}, s{sT0}, 2")
    A.e(f"s_add_u32 s{sU0}, s{sU0}, s{sT0}")
    A.e(f"s_add_u32 s{sU0}, s{sU0}, s{sHs}")
    A.e(f"s_mul_i32 s{sXq}, s{sT2}, 184320")
    for qt in range(1, 5):
        A.e(f"s_add_u32 s{sXq+qt}, s{sXq}, {qt*18432}")
    A.e(f"s_mov_b32 s{sU}, s{sU0}")
    A.e(f"s_mov_b32 s{sJob}, 0")
    A.e(f"s_mov_b32 s{sSlow}, 0")
    A.e(f"s_mov_b32 s{sFlag}, 0")
    A.e("s_waitcnt lgkmcnt(0)")
    mk_srd(A, sX, 64, 32*160*576*2)
    mk_srd(A, sK, 66, 134217728)
    mk_srd(A, sV, 68, 134217728)
    mk_srd(A, sWQ, 70, 576*4096*2)
    mk_srd(A, sWO, 72, 576*4096*2)
    mk_srd(A, sWS, 74, WS_USED)
    A.e(f"s_lshl_b32 s{sPf}, s2, 2")
    A.e(f"s_add_u32 s{sPf}, s{sPf}, s{sWave}")
    A.e(f"s_lshl_b32 s{sPf}, s{sPf}, 7")
    A.e(f"s_add_u32 s{sPf}, s{sPf}, 0x4000000")
    mark(A, real=True)
    mark(A)
    A.label("L_cold")
    unit_setup(A)
    A.e(f"v_lshrrev_b32 v{vE}, 4, v{vOo}")
    for i in range(3):
        A.e(f"v_add_u32 v{vE+1}, {64*i}, v{vE}")
        A.e(f"v_mul_u32_u24 v{vE+5}, 205, v{vE+1}")
        A.e(f"v_lshrrev_b32 v{vE+5}, 11, v{vE+5}")
        A.e(f"v_mul_u32_u24 v{vE+6}, 10, v{vE+5}")
        A.e(f"v_sub_u32 v{vE+1}, v{vE+1}, v{vE+6}")
        A.e(f"v_mul_u32_u24 v{vE+1}, 1152, v{vE+1}")
        A.e(f"v_lshl_add_u32 v{vE+2+i}, v{vE+5}, 6, v{vE+1}")
    A.e(f"v_and_b32 v{vE+1}, 31, v{vE}")
    A.e(f"v_lshrrev_b32 v{vE+5}, 5, v{vE}")
    A.e(f"v_lshlrev_b32 v{vE+5}, 19, v{vE+5}")
    A.e(f"v_lshl_add_u32 v{vE+5}, v{vE+1}, 6, v{vE+5}")
    A.vq = []
    qproj(A, True)
    A.e("s_branch L_att")
    B = Asm()
    attention(B)
    tailq = list(B.vq)
    A.label("L_warm")
    unit_setup(A)
    A.vq = tailq
    qproj(A, False)
    A.label("L_att")
    A.lines += B.lines
    A.e("s_cmp_lg_u64 s[62:63], 0")
    A.e(f"s_cselect_b32 s{sT0}, 1, 0")
    A.e(f"s_and_b32 s{sT1}, s{sJob}, 1")
    A.e(f"s_lshl_b32 s{sT0}, s{sT0}, s{sT1}")
    A.e(f"s_or_b32 s{sFlag}, s{sFlag}, s{sT0}")
    A.e(f"s_add_u32 s{sJob}, s{sJob}, 1")
    A.e(f"s_cmp_eq_u32 s{sJob}, 1")
    A.e("s_cbranch_scc0 L_notwarm")
    A.e(f"s_xor_b32 s{sU}, s{sU0}, 2")
    A.e("s_branch L_warm")
    A.label("L_notwarm")
    A.e(f"s_cmp_eq_u32 s{sJob}, 2")
    A.e("s_cbranch_scc0 L_noexch")
    A.e("s_waitcnt vmcnt(0) lgkmcnt(0)")
    A.e("s_barrier")
    A.e(f"v_mov_b32 v{vT}, s{sWave}")
    A.e(f"v_lshlrev_b32 v{vT}, 2, v{vT}")
    A.e(f"v_mov_b32 v{vT+1}, s{sFlag}")
    A.e(f"ds_write_b32 v{vT}, v{vT+1}")
    A.e("s_waitcnt lgkmcnt(0)")
    A.e("s_barrier")
    A.e(f"v_mov_b32 v{vT}, 0")
    A.e(f"ds_read_b128 v[{vE}:{vE+3}], v{vT}")
    A.e("s_waitcnt lgkmcnt(0)")
    A.e(f"v_or3_b32 v{vT+2}, v{vE}, v{vE+1}, v{vE+2}")
    A.e(f"v_or_b32 v{vT+2}, v{vT+2}, v{vE+3}")
    A.e("s_nop 0")
    A.e(f"v_readfirstlane_b32 s{sSlow}, v{vT+2}")
    A.e("s_nop 3")
    A.e("s_barrier")
    mark(A)
    mark(A, real=True)
    A.label("L_noexch")
    A.e(f"s_and_b32 s{sT0}, s{sSlow}, {0 if OPT['nofb'] else 3}")
    A.e(f"s_cmp_eq_u32 s{sT0}, 0")
    A.e("s_cbranch_scc1 L_a_done")
    A.e(f"s_and_b32 s{sT1}, s{sSlow}, 1")
    A.e(f"s_xor_b32 s{sT1}, s{sT1}, 1")
    A.e(f"s_lshl_b32 s{sT2}, s{sT1}, 1")
    A.e(f"s_xor_b32 s{sU}, s{sU0}, s{sT2}")
    A.e(f"s_add_u32 s{sT1}, s{sT1}, 1")
    A.e(f"s_andn2_b32 s{sSlow}, s{sSlow}, s{sT1}")
    A.e(f"s_or_b32 s{sSlow}, s{sSlow}, 4")
    A.e("s_waitcnt vmcnt(0) lgkmcnt(0)")
    A.e("s_barrier")
    A.e("s_branch L_cold")
    A.label("L_a_done")
    A.e("s_endpgm")

def kernel_b(A):
    ST = 5
    A.lines.append(".p2align 8")
    A.label("oproj_kernel")
    A.e("s_cmp_ge_u32 s2, 256")
    A.e("s_cbranch_scc1 L_b_done")
    A.e("s_load_dwordx2 s[4:5], s[0:1], 40")
    A.e("s_load_dwordx2 s[6:7], s[0:1], 56")
    A.e("v_lshrrev_b32 v1, 6, v0")
    A.e("v_and_b32 v2, 63, v0")
    A.e("s_nop 0")
    A.e("v_readfirstlane_b32 s3, v1")
    A.e("v_lshlrev_b32 v3, 4, v2")
    A.e("s_and_b32 s16, s2, 7")
    A.e("s_lshl_b32 s16, s16, 3")
    A.e("s_lshr_b32 s17, s2, 5")
    A.e("s_add_u32 s16, s16, s17")
    A.e("s_lshr_b32 s17, s2, 3")
    A.e("s_and_b32 s17, s17, 3")
    A.e("s_lshl_b32 s18, s3, 15")
    A.e(f"s_mul_i32 s20, s16, {5*131072}")
    A.e("s_add_u32 s20, s20, s18")
    for qt in range(1, 5):
        A.e(f"s_add_u32 s{20+qt}, s20, {qt*131072}")
    A.e(f"s_mul_i32 s25, s17, {9*131072}")
    A.e("s_add_u32 s25, s25, s18")
    A.e(f"s_add_u32 s25, s25, {WOT}")
    for i in range(1, 9):
        A.e(f"s_add_u32 s{25+i}, s25, {i*131072}")
    A.e("s_waitcnt lgkmcnt(0)")
    mk_srd(A, 8, 6, WS_USED)
    mk_srd(A, 12, 4, 32*160*576*2)
    def sreg(st, i):
        return (v(8 + 56*st + 4*i, 4) if st < 4 else a(180 + 4*i, 4))
    vo = [235, 4, 5, 6, 7, 232, 233, 234]
    if OPT["rot"] == 1: A.e("s_and_b32 s19, s2, 7")
    elif OPT["rot"] == 2:
        A.e("s_lshr_b32 s19, s2, 5")
        A.e("s_and_b32 s19, s19, 1")
        A.e("s_add_u32 s19, s19, s2")
    else: A.e("s_mov_b32 s19, 0")
    for g in range(8):
        A.e(f"s_add_u32 s18, s19, {g}")
        A.e("s_and_b32 s18, s18, 7")
        A.e("s_lshl_b32 s18, s18, 12")
        A.e(f"v_add_u32 v{vo[g]}, s18, v3")
    def loads(s):
        st = s % ST
        out = []
        order = [0, 5, 1, 2, 3, 4, 6, 7, 8, 9, 10, 11, 12, 13]
        for i in order:
            out.append((f"buffer_load_dwordx4 {sreg(st, i)}, v{vo[s//4]}, s[8:11], s{20+i} offen offset:{(s%4)*1024}{FL[OPT['bnt'] if i < 5 else OPT['wnt']]}", f"L{s}"))
        return out
    A.vq = []
    def bases():
        for w in range(4):
            A.e(f"s_cmp_gt_u32 s3, {w}")
            A.e(f"s_cselect_b32 s18, 1, 0")
            A.e(f"s_sub_u32 s18, s3, s18")
            A.e(f"s_mul_i32 s18, s18, 12288")
            A.e(f"s_add_u32 s18, s18, {w*36864}")
            A.e(f"s_cmp_eq_u32 s3, {w}")
            A.e(f"s_cselect_b32 s18, 147456, s18")
            A.e(f"v_add_u32 v{236+w}, s18, v3")
    A.e(f"s_lshl_b32 s{sPf}, s2, 2")
    A.e(f"s_add_u32 s{sPf}, s{sPf}, s3")
    A.e(f"s_lshl_b32 s{sPf}, s{sPf}, 7")
    A.e(f"s_add_u32 s{sPf}, s{sPf}, 0x4100000")
    mark(A, 240, 8, real=True)
    mark(A, 240, 8)
    for s in range(ST - 1):
        emit_list(A, loads(s))
    if OPT["ept"]: bases()
    wr = [(f"ds_write_b128 v{236 + ti%4}, {a(4*ti,4)} offset:{(ti//4)*1024}", None) for ti in range(45)]
    def last(w):
        s = 31
        order = [ti for ti in range(45) if ti % 4 != w] + [ti for ti in range(45) if ti % 4 == w]
        mf = []
        for ti in order:
            i, qt = ti // 5, ti % 5
            d = a(4*ti, 4)
            mf.append(f"{MF} {d}, {sreg(s%ST, 5+i)}, {sreg(s%ST, qt)}, {d}")
        nw = len([ti for ti in order if ti % 4 != w])
        fill = {}
        spread(fill, [[wr[ti]] for ti in order[:nw]], list(range(3, 3 + nw)))
        A.weave(mf, fill)
        A.e("s_nop 7")
        A.e("s_nop 7")
    for s in range(32 if OPT["ept"] < 2 else 31):
        A.wait([f"L{s}"])
        if s == 0: mark(A, 240, 8)
        mf = []
        for i in range(9):
            for qt in range(5):
                d = a(4*(i*5+qt), 4)
                mf.append(f"{MF} {d}, {sreg(s%ST, 5+i)}, {sreg(s%ST, qt)}, {'0' if s == 0 else d}")
        fill = {}
        if s + ST - 1 < 32:
            spread(fill, [[x] for x in loads(s + ST - 1)], list(range(1, 45, 3)))
        if s == 31 and OPT["ept"]:
            spread(fill, [[x] for x in wr[:41]], list(range(4, 45)))
        A.weave(mf, fill)
    A.e("s_nop 7")
    if OPT["ept"] == 1:
        A.e("s_nop 7")
        emit_list(A, wr[41:])
    mark(A, 240, 8)
    for w in range(4 if not OPT["ept"] else 0):
        A.e(f"s_cmp_eq_u32 s3, {w}")
        A.e(f"s_cbranch_scc1 L_b_skipw{w}")
        A.e(f"s_cmp_gt_u32 s3, {w}")
        A.e(f"s_cselect_b32 s18, 1, 0")
        A.e(f"s_sub_u32 s18, s3, s18")
        A.e(f"s_mul_i32 s18, s18, 12288")
        A.e(f"s_add_u32 s18, s18, {w*36864}")
        A.e("v_add_u32 v4, s18, v3")
        for n, ti in enumerate([ti for ti in range(45) if ti % 4 == w]):
            A.e(f"ds_write_b128 v4, {a(4*ti,4)} offset:{n*1024}")
        A.label(f"L_b_skipw{w}")
    A.e("v_and_b32 v5, 15, v2")
    A.e("v_mul_u32_u24 v5, 1152, v5")
    A.e("v_lshrrev_b32 v6, 4, v2")
    A.e("v_lshl_add_u32 v5, v6, 3, v5")
    A.e(f"s_mul_i32 s18, s16, {80*1152}")
    A.e("s_mul_i32 s19, s17, 288")
    A.e("s_add_u32 s18, s18, s19")
    for qt in range(5):
        A.e(f"s_add_u32 s{20+qt}, s18, {qt*16*1152}")
    A.e("s_mul_i32 s18, s3, 36864")
    A.e("v_add_u32 v232, s18, v3")
    for w in range(4):
        A.e(f"s_cmp_lg_u32 s3, {w}")
        A.e(f"s_cbranch_scc1 L_b_skipr{w}")
        tis = [ti for ti in range(45) if ti % 4 == w]
        if OPT["ept"] == 2:
            A.e("s_waitcnt vmcnt(0)")
            last(w)
        for n, ti in enumerate(tis):
            for r in range(4):
                A.e(f"v_accvgpr_read_b32 v{160+4*n+r}, a{4*ti+r}")
        A.e("s_waitcnt lgkmcnt(0)")
        A.e("s_barrier")
        def rdt(n):
            if n < len(tis):
                for k in range(3):
                    A.e(f"ds_read_b128 {v(8 + 12*n + 4*k, 4)}, v232 offset:{(k*12+n)*1024}")
        for n in range(5): rdt(n)
        for n, ti in enumerate(tis):
            i, qt = ti // 5, ti % 5
            A.e(f"s_waitcnt lgkmcnt({3*min(4, len(tis)-1-n)})")
            rdt(n + 5)
            for r in range(4):
                A.e(f"v_add_f32 v{160+4*n+r}, v{160+4*n+r}, v{8+12*n+r}")
                A.e(f"v_add_f32 v{8+12*n+4+r}, v{8+12*n+4+r}, v{8+12*n+8+r}")
            for r in range(4):
                A.e(f"v_add_f32 v{160+4*n+r}, v{160+4*n+r}, v{8+12*n+4+r}")
            A.e(f"v_cvt_pk_bf16_f32 v{8+12*n}, v{160+4*n}, v{160+4*n+1}")
            A.e(f"v_cvt_pk_bf16_f32 v{8+12*n+1}, v{160+4*n+2}, v{160+4*n+3}")
            A.e(f"buffer_store_dwordx2 {v(8+12*n,2)}, v5, s[12:15], s{20+qt} offen offset:{32*i}{FL[OPT['ont']]}")
        A.label(f"L_b_skipr{w}")
    mark(A, 240, 8)
    mark(A, 240, 8, real=True)
    A.label("L_b_done")
    A.e("s_endpgm")

def kd(name, vg, acc):
    return f""".amdhsa_kernel {name}
  .amdhsa_next_free_vgpr {vg}
  .amdhsa_next_free_sgpr 96
  .amdhsa_accum_offset {acc}
  .amdhsa_group_segment_fixed_size 0
  .amdhsa_kernarg_size 64
  .amdhsa_user_sgpr_count 2
  .amdhsa_user_sgpr_kernarg_segment_ptr 1
  .amdhsa_system_sgpr_workgroup_id_x 1
.end_amdhsa_kernel
"""

def main():
    A = Asm()
    kernel_a(A)
    kernel_b(A)
    head = f"""; MHA block with KV cache: attn_kernel (Q-proj + attention -> ws), oproj_kernel (O-proj). Generated by work/gen.py
; @launch kernel=attn_kernel grid=(256,1,1) block=(256,1,1) lds=163840
; @launch kernel=oproj_kernel grid=(256,1,1) block=(256,1,1) lds=163840
.amdgcn_target "amdgcn-amd-amdhsa--gfx950"
.text
.globl attn_kernel
.type attn_kernel,@function
.globl oproj_kernel
.type oproj_kernel,@function
"""
    tail = '.section .rodata,"a"\n.p2align 6\n' + kd("attn_kernel", 512, 256) + ".p2align 6\n" + kd("oproj_kernel", 512, 256)
    open(sys.argv[1], "w").write(head + "\n".join(A.lines) + "\n" + tail)

main()
```

```python
import sys, struct, math

NAME = "standalone__mha_block_cached__near_ridge"
OPT = dict(nt=1, thr_log2=24, prof=0, map=0, nox=0, wlin=0, nowd=0, nord=0, nofb=0, nokv=0, nobar=0, xlin=0, ntw=0, ntx=0, warm=0, ntwarm=0, kl=1, vs=1, deep=1, ost=0, xoob=0, rot=0, qrot=0, bnt=0, wnt=0, wst=0, ont=0, ept=2, vreg=2, vst=5, cst=3, cs=0, wsn=0, krot=0)
for a in sys.argv[2:]:
    k, v = a.split("=")
    OPT[k] = int(v)

def f32bits(x):
    return struct.unpack("<I", struct.pack("<f", x))[0]

class Asm:
    def __init__(self):
        self.lines = []
        self.vq = []
    def e(self, s):
        self.lines.append("  " + s)
    def label(self, s):
        self.lines.append(s + ":")
    def c(self, s):
        self.lines.append("  ; " + s)
    def vm(self, s, tag):
        self.e(s)
        self.vq.append(tag)
    def vmn(self, tags):
        last = -1
        for i, t in enumerate(self.vq):
            if t in tags:
                last = i
        if last < 0:
            return None
        n = len(self.vq) - 1 - last
        self.vq = self.vq[last + 1:]
        return min(n, 63)
    def wait(self, tags=(), lgkm=None, vm0=False):
        n = self.vmn(tags) if tags else None
        if vm0:
            n = 0
            self.vq = []
        s = "s_waitcnt"
        if n is not None:
            s += f" vmcnt({n})"
        if lgkm is not None:
            s += f" lgkmcnt({lgkm})"
        if s != "s_waitcnt":
            self.e(s)
    def weave(self, mf, fill):
        for i, m in enumerate(mf):
            self.e(m)
            for (s, tag) in fill.get(i, []):
                self.item(s, tag)
    def item(self, s, tag):
        if s == "WAIT":
            self.wait(tag)
        elif tag is None:
            self.e(s)
        else:
            self.vm(s, tag)

def v(i, n=1):
    return f"v{i}" if n == 1 else f"v[{i}:{i+n-1}]"
def a(i, n=1):
    return f"a{i}" if n == 1 else f"a[{i}:{i+n-1}]"
MF = "v_mfma_f32_16x16x32_bf16"

OWS = 0
WOT = 320 * 128 * 1024
WS_USED = WOT + 36 * 128 * 1024
if OPT["prof"]: WS_USED = 0x5000000
sPf = 78
OOB = 0x7F000000

vKd = 1; vVd = 5; vWd = 7; vXo = 11; vKa = 12; vVa = 16; vWa = 24; vOo = 28; vWoL = 29
vT = 30
vQ = 36; vX = 36; vAcc = 92
vKf = 116; vS = 180; vP = 196; vC = 216; vE = 236
aO = 0; aVf = 160; aWf = 160; aL = 224; aOne = 244
L_W = [0, 8192, 16384]
L_X = 24576
sXm = 47; sWarm = 49
vXr = 252
sM4 = 79; sQh = 80; sHs = 81; HB = 81920
L_V = [24576, 32768, 40960, 16384]
L_K0 = 49152
sX, sK, sV, sWQ, sWS, sWO = 8, 12, 16, 20, 24, 28
sW4 = 32; sU = 33; sKb = 34; sKn = 35; sWb = 36; sXq = 37; sOb = 42; sWoG = 43; sWoS = 45
sJob = 46; sScale = 48; sT0 = 50; sT1 = 51; sWn = 52; sFlag = 53; sU0 = 54; sWave = 55; sSlow = 56; sThr = 57
sT2 = 58; sT3 = 59
NT = {0: "", 1: " nt", 2: " sc0 sc1", 3: " sc1", 4: " sc0 sc1 nt", 5: " sc1 nt", 6: " sc0 nt"}[OPT["nt"]]
NTW = " nt" if OPT["ntw"] else ""
FL = {0: "", 1: " nt", 2: " sc0 sc1", 3: " sc1", 4: " sc0 sc1 nt", 5: " sc1 nt", 6: " sc0 nt"}
OSTF = FL[OPT["ost"]]; OSTF_OLD = ""

def mark(A, t0=30, srd=24, real=False, lvl=1):
    if not OPT["prof"]: return
    if not real and srd == 24 and OPT["prof"] != lvl: return
    A.e("s_memrealtime s[76:77]" if real else "s_memtime s[76:77]")
    A.e("s_waitcnt lgkmcnt(0)")
    A.e(f"v_mov_b32 v{t0}, s76")
    A.e(f"v_mov_b32 v{t0+1}, s77")
    A.e(f"v_mov_b32 v{t0+2}, 0")
    A.vm(f"buffer_store_dwordx2 v[{t0}:{t0+1}], v{t0+2}, s[{srd}:{srd+3}], s{sPf} offen", "PF")
    A.e(f"s_add_u32 s{sPf}, s{sPf}, 8")

sRot = 82
def kv_addr(base, j):
    if not OPT["krot"]: return f"s_add_u32 s{sT0}, s{base}, {j*8192}"
    return (f"s_add_u32 s{sT0}, s{sRot}, {j*8192}\n  s_and_b32 s{sT0}, s{sT0}, 0x1ffff\n  s_add_u32 s{sT0}, s{sT0}, s{base}")
def dma_kv(kind, jj, pieces=(0, 1, 2, 3)):
    base = sKb if jj < 16 else sKn
    j = jj % 16
    slot = (L_K0 + 8192 * (jj % 4)) if kind == "K" else L_V[jj % 4]
    out = [(f"s_add_u32 m0, s{sM4}, {slot}", None),
           (kv_addr(base, j), None)]
    for pp in pieces:
        vo = vKd + pp if kind == "K" else vVd + (pp & 1)
        r = sK if kind == "K" else sV
        if OPT["nokv"]: out.append(("s_nop 0", None)); continue
        out.append((f"buffer_load_dwordx4 v{vo}, s[{r}:{r+3}], s{sT0} offen offset:{pp*1024}{NT} lds", f"{kind}{jj}"))
    return out

PARK = {("V",0): 40, ("V",1): 56, ("V",2): 72, ("V",3): 88, ("K",4): 112, ("K",5): 128, ("V",4): 144}
vPk = 87
def park_ld(kind, jj):
    out = [("s_nop 0", None), (kv_addr(sKb, jj), None)]
    for pp in range(4):
        vo = vKd + pp if kind == "K" else vVd + (pp & 1)
        r = sK if kind == "K" else sV
        out.append((f"buffer_load_dwordx4 {a(PARK[(kind,jj)] + 4*pp, 4)}, v{vo}, s[{r}:{r+3}], s{sT0} offen offset:{pp*1024}{NT}", "PK" if OPT["vreg"] < 3 else f"P{kind}{jj}"))
    return out
def park_wr(kind, jj, vb):
    slot = (L_K0 + 8192 * (jj % 4)) if kind == "K" else L_V[jj % 4]
    return [(f"ds_write_b128 v{vb}, {a(PARK[(kind,jj)] + 4*pp, 4)} offset:{slot + pp*1024}", None) for pp in range(4)]

def dma_w(t, nxt=False, slot=None):
    base = sWn if nxt else sWb
    out = [(f"s_add_u32 m0, s{sM4}, {L_W[t%3] if slot is None else slot}", None),
           (f"s_add_u32 s{sT1}, s{base}, {(t*8192 if OPT['wlin']==3 else 0) if OPT['wlin'] else t*262144}", None)]
    for pp in range(4):
        if OPT["nowd"]: out.append(("s_nop 0", None)); continue
        out.append((f"buffer_load_dwordx4 v{vWd+pp}, s[{sWQ}:{sWQ+3}], s{sT1} offen offset:{pp*1024}{NTW} lds", f"W{t}"))
    return out

NTX = " nt" if OPT["ntx"] else ""
def xfrag(t, qt):
    o = 8*qt + 4*(t % 2)
    return v(36 + o, 4) if (t//2) % 2 == 0 else a(o, 4)
def ld_x(p, qt):
    po = 0 if OPT["xlin"] else 128*p
    return [(f"s_add_u32 m0, s{sXm}, {(p%2)*HB + qt*2048}", None), (f"s_add_u32 s{sT1}, s{sXq+qt}, {po}", None),
            (f"buffer_load_dwordx4 v{vXo}, s[{sX}:{sX+3}], s{sT1} offen{NTX} lds", f"X{p}")]
def rd_x(p):
    return [(f"ds_read_b128 {xfrag(2*p+ks, qt)}, v{vXr + 2*(p%2) + ks} offset:{qt*2048}", None) for ks in range(2) for qt in range(5)]

def rd_w(t, slot):
    out = []
    for T in range(8):
        for hb in range(2):
            out.append((f"ds_read_b64_tr_b16 {a(aWf + 32*(t%2) + 4*T + 2*hb, 2)}, v{(vWa if slot < L_K0 else 88) + T//2} offset:{slot % L_K0 + 8*(T%2) + 1024*hb}", None))
    return out

def rd_k(j):
    return [(f"ds_read_b128 {v(vKf + 32*(j%2) + 16*aa + 4*t, 4)}, v{vKa+t} offset:{8192*(j%4) + 4096*aa}", None)
            for aa in range(2) for t in range(4)]

def rd_v(j):
    return [(f"ds_read_b64_tr_b16 {a(aVf + 32*(j%2) + 4*T + 2*hb, 2)}, v{vVa+T} offset:{L_V[j%4] + 4096*hb}", None)
            for T in range(8) for hb in range(2)]

def spread(fill, items, slots):
    for k, grp in enumerate(items):
        fill.setdefault(slots[k], []).extend(grp)

def emit_list(A, lst):
    for s, tag in lst:
        A.item(s, tag)

def qproj(A, cold):
    A.c("---- Q-proj " + ("cold" if cold else "warm"))
    N = 18
    deep = cold and OPT["deep"]
    R7 = L_W + [L_K0 + 8192*i for i in range(4)]
    def wsl(t):
        if not deep: return L_W[t % 3]
        if t == N - 1: return L_W[0]
        return R7[t % 7]
    wiss = {}
    for t in range(3, N):
        if not deep: st = t - 3
        elif t == N - 1: st = N - 4
        else: st = max((t - 3)//2, t - 5)
        wiss.setdefault(st, []).append(t)
    kiss = {N-8+j: j for j in range(4)} if deep else ({3+2*j: j for j in range(4)} if (cold and OPT["kl"]) else {})
    if deep:
        for i in range(4): A.e(f"v_add_u32 v{88+i}, {L_K0}, v{vWa+i}")
    piss = {}
    if OPT["vreg"]:
        assert not deep
        ext = [("K",4), ("K",5), ("V",4)] if OPT["vreg"] == 2 else []
        if cold:
            seq = [("K",0), ("K",1), ("V",0), ("K",2), ("V",1), ("K",3), ("V",2), ("V",3)] + ext
            kiss = {OPT["cst"]+i: x[1] for i, x in enumerate(seq) if x not in PARK}
            piss = {OPT["cst"]+i: x for i, x in enumerate(seq) if x in PARK}
        else:
            piss = {OPT["vst"]+i: x for i, x in enumerate([("V",j) for j in range(4)] + ext)}
        if OPT["vreg"] == 3:
            T7 = [("V",0), ("V",1), ("V",2), ("V",3), ("K",4), ("K",5), ("V",4)]
            CS = [[3,5,7,9, 11,13,14,15,16,17,17], [3,5,7,9, 14,14,15,15,16,16,17], [2,4,6,8, 10,12,14,14,15,15,16]][OPT["cs"]]
            WS = [[5,8,11,14,15,16,17], [14,14,15,15,16,16,17], [4,7,10,13,14,14,15], [6,10,14,14,15,15,16]][OPT["wsn"]]
            piss = {}
            if cold: kiss = {CS[j]: j for j in range(4)}
            for st, x in zip(CS[4:] if cold else WS, T7): piss.setdefault(st, []).append(x)
        else:
            assert max(piss) <= 13
            piss = {k: [x] for k, x in piss.items()}
        A.e(f"v_add_u32 v{vPk}, s{sM4}, v{vOo}")
    if cold:
        for qt in range(5): emit_list(A, ld_x(0, qt))
        emit_list(A, dma_w(0))
        if OPT["warm"]:
            ntw = " nt" if OPT["ntwarm"] else ""
            for i in range(5):
                if i < 3: A.vm(f"buffer_load_dword v76, v{vE+2+i}, s[{sX}:{sX+3}], s{sWarm} offen{ntw}", "WU")
                A.e(f"s_add_u32 s{sT1}, s{sThr}, {i*1048576}")
                A.vm(f"buffer_load_dword v77, v{vE+5}, s[{sWQ}:{sWQ+3}], s{sT1} offen{ntw}", "WU")
        emit_list(A, dma_w(1))
        for qt in range(5): emit_list(A, ld_x(1, qt))
        emit_list(A, dma_w(2))
        if not kiss:
            for jj in range(4): emit_list(A, dma_kv("K", jj))
    ml = 3 if cold else 2
    mark(A, lvl=ml)
    A.wait(["W0", "X0"])
    A.e("s_barrier")
    emit_list(A, rd_w(0, wsl(0)))
    emit_list(A, rd_x(0))
    for t in range(18):
        A.wait([f"W{t+1}"] + ([f"X{t//2+1}"] if t % 2 else []) + (["PK"] if t == 16 else []), lgkm=0)
        A.e("s_barrier")
        if t % 2 == 0: mark(A, lvl=ml)
        mf = []
        for T in range(8):
            for qt in range(5):
                f = (T//2)*5 + qt
                d = v(vAcc + 8*f + 4*(T%2), 4)
                mf.append(f"{MF} {d}, {a(aWf + 32*(t%2) + 4*T, 4)}, {xfrag(t, qt)}, {'0' if t == 0 else d}")
        fill = {}
        groups = []
        p = t//2 + 2
        if p <= 8:
            for qt in ((0, 1, 2) if t % 2 == 0 else (3, 4)): groups.append(ld_x(p, qt))
        ws_ = [dma_w(x, slot=wsl(x)) for x in wiss.get(t, [])]
        if t in kiss: ws_.append(dma_kv("K", kiss[t]))
        for x in piss.get(t, []): ws_.append(park_ld(*x))
        for w in ws_:
            groups += [w[0:3], [w[3]], [w[4]], [w[5]]]
        for vj in ({16: (0,), 17: (1,)} if (OPT["vs"] and not OPT["vreg"]) else {16: (0, 1, 2), 17: (3,)}).get(t, ()):
            if OPT["vreg"] == 3: continue
            if OPT["vreg"]:
                groups += [[x] for x in park_wr("V", vj, vPk)]
                continue
            w = dma_kv("V", vj)
            groups += [w[0:3], [w[3]], [w[4]], [w[5]]]
        rds = [[r] for r in rd_w(t+1, wsl(t+1))] if t + 1 <= 17 else []
        if t % 2 == 1 and t//2 + 1 <= 8:
            xr = [[r] for r in rd_x(t//2 + 1)]
            spread(fill, xr, list(range(3, 33, 3)))
        spread(fill, rds, list(range(0, 32, 2)))
        spread(fill, groups, list(range(1, 40, 3)) if len(groups) > 7 else list(range(1, 36, 5)))
        A.weave(mf, fill)
    if OPT["vreg"] == 3:
        A.wait(["PV0"])
        emit_list(A, park_wr("V", 0, vPk))
    mark(A, lvl=ml)
    A.e("s_nop 7")
    for f in range(20):
        b = vAcc + 8*f
        for i in range(8):
            A.e(f"v_mul_f32 v{b+i}, s{sScale}, v{b+i}")
        for i in range(4):
            A.e(f"v_cvt_pk_bf16_f32 v{vQ+4*f+i}, v{b+2*i}, v{b+2*i+1}")
    mark(A, lvl=ml)

def qk_mf(j, qt, sb, czero=False):
    mf = []
    for t in range(4):
        for aa in range(2):
            d = v(vS + 8*sb + 4*aa, 4)
            c = d if t > 0 else ("0" if czero else v(vC + 4*qt, 4))
            mf.append(f"{MF} {d}, {v(vKf + 32*(j%2) + 16*aa + 4*t, 4)}, {v(vQ + 4*(t*5+qt), 4)}, {c}")
    return mf

def pv_mf(j, qt):
    mf = []
    for T in range(8):
        d = a(aO + 32*qt + 4*T, 4)
        mf.append(f"{MF} {d}, {a(aVf + 32*(j%2) + 4*T, 4)}, {v(vP + 4*qt, 4)}, {'0' if j == 0 else d}")
    d = a(aL + 4*qt, 4)
    mf.append(f"{MF} {d}, {a(aOne, 4)}, {v(vP + 4*qt, 4)}, {'0' if j == 0 else d}")
    return mf

def softmax_ops(sb, qt):
    s = vS + 8*sb
    ex = [[(f"v_exp_f32 v{s+i}, v{s+i}", None)] for i in range(8)]
    cv = [(f"v_cvt_pk_bf16_f32 v{vP+4*qt+i}, v{s+2*i}, v{s+2*i+1}", None) for i in range(4)]
    return ex, cv

def lane_max(A, m, t):
    A.e(f"v_mov_b32 v{t}, v{m}")
    A.e("s_nop 1")
    A.e(f"v_permlane32_swap_b32 v{t}, v{m}")
    A.e("s_nop 1")
    A.e(f"v_max_f32 v{m}, v{t}, v{m}")
    A.e(f"v_mov_b32 v{t}, v{m}")
    A.e("s_nop 1")
    A.e(f"v_permlane16_swap_b32 v{t}, v{m}")
    A.e("s_nop 1")
    A.e(f"v_max_f32 v{m}, v{t}, v{m}")

def maxpass(A):
    A.c("---- max pass (fallback)")
    for qt in range(5):
        A.e(f"v_mov_b32 v{vE+qt}, 0xff800000")
    A.e(f"s_mov_b32 s{sT2}, s{sKb}")
    A.e(f"s_add_u32 s{sT3}, s{sKb}, 131072")
    A.label("L_maxloop")
    A.e("s_barrier")
    A.e(f"s_add_u32 m0, s{sM4}, {L_W[0]}")
    A.e("s_nop 0")
    for pp in range(4):
        A.e(f"buffer_load_dwordx4 v{vKd+pp}, s[{sK}:{sK+3}], s{sT2} offen offset:{pp*1024} lds")
    A.e("s_waitcnt vmcnt(0)")
    A.e("s_barrier")
    for t in range(4):
        A.e(f"v_subrev_u32 v{vT+t}, {L_K0}, v{vKa+t}")
    for aa in range(2):
        for t in range(4):
            A.e(f"ds_read_b128 {v(vKf + 16*aa + 4*t, 4)}, v{vT+t} offset:{L_W[0] + 4096*aa}")
    A.e("s_waitcnt lgkmcnt(0)")
    for qt in range(5):
        for m in qk_mf(0, qt, 0, czero=True): A.e(m)
        A.e("s_nop 7")
        s = vS
        for i in range(4):
            A.e(f"v_max3_f32 v{vE+qt}, v{s+2*i}, v{s+2*i+1}, v{vE+qt}")
        A.e("s_nop 3")
    A.e(f"s_add_u32 s{sT2}, s{sT2}, 8192")
    A.e(f"s_cmp_lt_u32 s{sT2}, s{sT3}")
    A.e("s_cbranch_scc1 L_maxloop")
    for qt in range(5):
        lane_max(A, vE+qt, vT)
        for i in range(4):
            A.e(f"v_sub_f32 v{vC+4*qt+i}, 0, v{vE+qt}")
    A.e("s_barrier")

def attention(A):
    A.c("---- attention prologue")
    A.vq = [f"V{j}" for j in range(2 if OPT["vs"] else 4) for _ in range(4)] if not OPT["vreg"] else []
    if OPT["vreg"] == 3: A.vq = ["PV"] + ["PE"]*12
    mark(A)
    if OPT["vs"] and not OPT["vreg"]: emit_list(A, dma_kv("V", 2))
    A.e(f"s_cmp_eq_u32 s{sSlow}, 0")
    A.e("s_cbranch_scc1 L_nomax")
    maxpass(A)
    A.label("L_nomax")
    emit_list(A, rd_k(0))
    emit_list(A, rd_k(1))
    A.wait(lgkm=8)
    for m in qk_mf(0, 0, 1, czero=True): A.e(m)
    for qt in range(5):
        sb = (qt + 1) % 2
        s = vS + 8*sb
        if qt == 2 and OPT["vs"] and not OPT["vreg"]: emit_list(A, dma_kv("V", 3))
        if qt < 4:
            for m in qk_mf(0, qt+1, qt % 2, czero=True): A.e(m)
        else:
            A.wait(["V0"])
            A.e("s_barrier")
            emit_list(A, rd_v(0))
            if OPT["vreg"] == 3:
                A.e(f"v_add_u32 v{vT+4}, s{sM4}, v{vOo}")
                A.wait(["PV"])
                for vj in (1, 2, 3): emit_list(A, park_wr("V", vj, vT+4))
        m = vT; t = vT + 1
        A.e(f"v_max3_f32 v{m}, v{s}, v{s+1}, v{s+2}")
        A.e(f"v_max3_f32 v{m}, v{s+3}, v{s+4}, v{m}")
        A.e(f"v_max3_f32 v{m}, v{s+5}, v{s+6}, v{m}")
        A.e(f"v_max_f32 v{m}, v{s+7}, v{m}")
        lane_max(A, m, t)
        A.e(f"v_sub_f32 v{m}, 0, v{m}")
        for i in range(4):
            A.e(f"v_cndmask_b32 v{vC+4*qt+i}, v{m}, v{vC+4*qt+i}, s[60:61]")
        for i in range(8):
            A.e(f"v_add_f32 v{s+i}, v{s+i}, v{vC+4*qt}")
        if qt < 4:
            ex, cv = softmax_ops(sb, qt)
            for g in ex: emit_list(A, g)
            A.e("s_nop 0")
            emit_list(A, cv)
    mark(A)
    for j in range(16):
        A.c(f"---- iter {j}")
        A.wait([f"K{j+2}", f"V{j+1}"] if j < 15 else [], lgkm=0)
        A.e("s_barrier")
        vmg = []
        def addkv(kind, jj):
            kv = dma_kv(kind, jj)
            vmg.extend([kv[0:3], [kv[3]], [kv[4]], [kv[5]]])
        if j >= 14:
            for qt in range(5): vmg.append(ld_x(j - 14, qt))
        if j == 0 and OPT["vreg"] == 2:
            A.e(f"v_add_u32 v{vT+4}, s{sM4}, v{vOo}")
            for x in (("K",4), ("K",5), ("V",4)): emit_list(A, park_wr(*x, vT+4))
        elif not (j == 0 and OPT["vreg"] == 3):
            if j == 0: addkv("K", 4)
            if j + 5 <= 19: addkv("K", j+5)
            if j + 4 <= 15: addkv("V", j+4)
        wt = {12: 0, 13: 1, 15: 2}.get(j)
        if wt is not None:
            w = dma_w(wt, nxt=True)
            vmg.extend([w[0:3], [w[3]], [w[4]], [w[5]]])
        if j == 14:
            for i in range(3):
                for e8 in range(8):
                    vmg.append([(f"buffer_load_ushort v{vKf + 8*i + e8}, v{vWoL}, s[{sWO}:{sWO+3}], s{sWoG + e8//4} offen offset:{(e8%4)*1152 + 32*i}", "G")])

        rds = []
        if j + 2 <= 15: rds += [[r] for r in rd_k(j+2)]
        if j + 1 <= 15: rds += [[r] for r in rd_v(j+1)]
        others = []
        i1 = i2 = 0
        while i1 < len(vmg) or i2 < len(rds):
            if i2 < len(rds): others.append(rds[i2]); i2 += 1
            if i1 < len(vmg): others.append(vmg[i1]); i1 += 1
        for qt in range(5):
            n = 5*j + qt
            if j == 0 and qt == 2 and OPT["vreg"] == 3:
                A.wait(["PE"])
                for x in (("K",4), ("K",5), ("V",4)): emit_list(A, park_wr(*x, vT+4))
            mf = (qk_mf(j+1, qt, n % 2) if j < 15 else []) + pv_mf(j, qt)
            fill = {}
            nm = len(mf)
            do_sm = (j < 15) or qt == 0
            free = list(range(nm))
            if do_sm:
                ex, cv = softmax_ops((n-1) % 2, (qt - 1) % 5)
                if nm == 17:
                    exs = [0, 2, 4, 6, 8, 10, 12, 13]; cvs = [14, 15]
                else:
                    exs = [0, 1, 2, 3, 4, 5, 6, 7]; cvs = [8, 8]
                spread(fill, ex, exs)
                if cvs[0] == 8: fill.setdefault(8, [])
                fill.setdefault(cvs[0], []).extend(cv[0:2])
                fill.setdefault(cvs[1], []).extend(cv[2:4])
                free = [s for s in range(nm) if s not in exs and s not in cvs]
                if not free: free = [8]
            rem = 5 - qt
            k = -(-len(others) // rem) if qt < 4 else len(others)
            k = max(k, min(len(others), len(free)))
            take, others = others[:k], others[k:]
            for idx, g in enumerate(take):
                fill.setdefault(free[idx % len(free)] if len(take) <= len(free) else free[idx * len(free) // len(take)], []).extend(g)
            A.weave(mf, fill)
    A.c("---- epilogue")
    mark(A)
    A.e("s_nop 7")
    A.e("s_mov_b64 s[62:63], 0")
    for qt in range(5):
        A.e(f"v_accvgpr_read_b32 v{vC+qt}, a{aL+4*qt}")
    for qt in range(5):
        A.e(f"v_cmp_nlt_f32 vcc, v{vC+qt}, v{vT+5}")
        A.e(f"v_rcp_f32 v{vC+qt}, v{vC+qt}")
        A.e("s_or_b64 s[62:63], s[62:63], vcc")
    k = 0
    for qt in range(5):
        for jp in range(4):
            tb = [vS, vS+8, vP, vP+8][k % 4]
            ob = vE + 4*(k % 4)
            k += 1
            for i in range(8):
                A.e(f"v_accvgpr_read_b32 v{tb+i}, a{aO + 32*qt + 8*jp + i}")
            for i in range(8):
                A.e(f"v_mul_f32 v{tb+i}, v{tb+i}, v{vC+qt}")
            for i in range(4):
                A.e(f"v_cvt_pk_bf16_f32 v{ob+i}, v{tb+2*i}, v{tb+2*i+1}")
            if jp == 0:
                A.e(f"s_add_u32 s{sT0}, s{sOb}, {qt*131072}")
            A.vm(f"buffer_store_dwordx4 {v(ob,4)}, v{vOo}, s[{sWS}:{sWS+3}], s{sT0} offen offset:{jp*1024}{OSTF}", "ST")
    A.wait(["G"])
    for i in range(3):
        for p in range(4):
            A.e(f"v_lshl_or_b32 v{vKf+32+4*i+p}, v{vKf+8*i+2*p+1}, 16, v{vKf+8*i+2*p}")
        A.e(f"s_add_u32 s{sT0}, s{sWoS}, {i*131072}")
        A.vm(f"buffer_store_dwordx4 {v(vKf+32+4*i,4)}, v{vOo}, s[{sWS}:{sWS+3}], s{sT0} offen{FL[OPT['wst']]}", "ST")
    mark(A)

def unit_setup(A):
    A.e(f"s_lshl_b32 s{sKb}, s{sU}, 17")
    A.e(f"s_xor_b32 s{sKn}, s{sKb}, 262144")
    A.e(f"s_and_b32 s{sT0}, s{sU}, 31")
    A.e(f"s_lshl_b32 s{sWb}, s{sT0}, 8")
    A.e(f"s_xor_b32 s{sWn}, s{sWb}, 512")
    if OPT["wlin"] == 3:
        A.e(f"s_mul_i32 s{sWb}, s{sWb}, 576")
        A.e(f"s_mul_i32 s{sWn}, s{sWn}, 576")
    A.e(f"s_cmp_eq_u32 s{sJob}, 0")
    A.e(f"s_cselect_b32 s{sKn}, s{sKn}, {OOB}")
    A.e(f"s_cselect_b32 s{sWn}, s{sWn}, {OOB}")
    A.e(f"s_lshr_b32 s{sT1}, s{sU}, 5")
    A.e(f"s_mul_i32 s{sT1}, s{sT1}, 10")
    A.e(f"s_mul_i32 s{sT2}, s{sQh}, 5")
    A.e(f"s_add_u32 s{sT1}, s{sT1}, s{sT2}")
    A.e(f"s_lshl_b32 s{sT1}, s{sT1}, 17")
    A.e(f"s_lshl_b32 s{sT0}, s{sT0}, 12")
    A.e(f"s_add_u32 s{sOb}, s{sT1}, s{sT0}")
    A.e(f"s_lshl_b32 s{sT0}, s{sU}, 1")
    A.e(f"s_add_u32 s{sT0}, s{sT0}, s{sQh}")
    A.e(f"s_lshr_b32 s{sT1}, s{sT0}, 4")
    A.e(f"s_and_b32 s{sT0}, s{sT0}, 15")
    A.e(f"s_mul_i32 s{sT2}, s{sT1}, {32*1152}")
    A.e(f"s_mul_i32 s{sT3}, s{sT0}, 96")
    A.e(f"s_add_u32 s{sWoG}, s{sT2}, s{sT3}")
    A.e(f"s_add_u32 s{sWoG+1}, s{sWoG}, {16*1152}")
    A.e(f"s_mul_i32 s{sT2}, s{sT0}, {3*131072}")
    A.e(f"s_lshl_b32 s{sT3}, s{sT1}, 10")
    A.e(f"s_add_u32 s{sT2}, s{sT2}, s{sT3}")
    A.e(f"s_add_u32 s{sWoS}, s{sT2}, {WOT}")
    A.e(f"s_cmp_lt_u32 s{sT0}, 12")
    A.e(f"s_cselect_b32 s{sWoG}, s{sWoG}, {OOB}")
    A.e(f"s_cselect_b32 s{sWoG+1}, s{sWoG+1}, {OOB}")
    A.e(f"s_cselect_b32 s{sWoS}, s{sWoS}, {OOB}")
    A.e(f"s_cmp_lg_u32 s{sSlow}, 0")
    A.e("s_cselect_b64 s[60:61], -1, 0")

def mk_srd(A, s, p, nbytes):
    A.e(f"s_mov_b32 s{s}, s{p}")
    A.e(f"s_and_b32 s{s+1}, s{p+1}, 0xffff")
    A.e(f"s_mov_b32 s{s+2}, {nbytes}")
    A.e(f"s_mov_b32 s{s+3}, 0x00020000")

def kernel_a(A):
    A.lines.append(".p2align 8")
    A.label("attn_kernel")
    A.e("s_cmp_ge_u32 s2, 256")
    A.e("s_cbranch_scc1 L_a_done")
    A.e("s_load_dwordx8 s[64:71], s[0:1], 0")
    A.e("s_load_dwordx2 s[72:73], s[0:1], 32")
    A.e("s_load_dwordx2 s[74:75], s[0:1], 56")
    L, g, q, r, c = vT, vT+1, vT+2, vT+3, vT+4
    A.e(f"v_lshrrev_b32 v{g}, 6, v0")
    A.e(f"v_and_b32 v{L}, 63, v0")
    A.e("s_nop 0")
    A.e(f"v_readfirstlane_b32 s{sWave}, v{g}")
    A.e(f"v_lshrrev_b32 v{g}, 4, v{L}")
    A.e(f"v_and_b32 v{q}, 15, v{L}")
    A.e(f"v_lshrrev_b32 v{r}, 2, v{q}")
    A.e(f"v_and_b32 v{c}, 3, v{L}")
    A.e(f"s_and_b32 s{sQh}, s{sWave}, 1")
    A.e(f"s_lshr_b32 s{sHs}, s{sWave}, 1")
    A.e(f"s_lshl_b32 s{sW4}, s{sQh}, 12")
    A.e(f"s_mul_i32 s{sT3}, s{sHs}, {HB}")
    A.e(f"s_add_u32 s{sM4}, s{sW4}, s{sT3}")
    if OPT["krot"] == 1:
        A.e(f"s_lshr_b32 s{sRot}, s2, 4")
        A.e(f"s_add_u32 s{sRot}, s{sRot}, s2")
        A.e(f"s_lshl_b32 s83, s{sHs}, 3")
        A.e(f"s_add_u32 s{sRot}, s{sRot}, s83")
    elif OPT["krot"] == 2:
        A.e(f"s_lshr_b32 s{sRot}, s2, 3")
        A.e(f"s_lshl_b32 s{sRot}, s{sRot}, 1")
        A.e(f"s_add_u32 s{sRot}, s{sRot}, s{sHs}")
    if OPT["krot"]:
        A.e(f"s_and_b32 s{sRot}, s{sRot}, 15")
        A.e(f"s_lshl_b32 s{sRot}, s{sRot}, 13")
    t0, t1 = vE, vE+1
    for pp in range(4):
        A.e(f"v_add_u32 v{t0}, {4*pp}, v{g}")
        A.e(f"v_xor_b32 v{t0}, v{t0}, v{q}")
        A.e(f"v_lshlrev_b32 v{t0}, 4, v{t0}")
        A.e(f"v_lshl_add_u32 v{t0}, v{g}, 8, v{t0}")
        A.e(f"v_add_u32 v{vKd+pp}, s{sW4}, v{t0}")
    for p1 in range(2):
        A.e(f"v_add_u32 v{t0}, {4*p1}, v{g}")
        A.e(f"v_lshlrev_b32 v{t0}, 1, v{t0}")
        A.e(f"v_xor_b32 v{t0}, v{t0}, v{q}")
        A.e(f"v_lshlrev_b32 v{t0}, 4, v{t0}")
        A.e(f"v_lshl_add_u32 v{t0}, v{g}, 8, v{t0}")
        A.e(f"v_add_u32 v{vVd+p1}, s{sW4}, v{t0}")
    A.e(f"s_lshl_b32 s{sT0}, s{sQh}, 17")
    for pp in range(4):
        A.e(f"v_lshlrev_b32 v{t0}, 2, v{g}")
        A.e(f"v_xor_b32 v{t0}, v{t0}, v{q}")
        A.e(f"v_lshlrev_b32 v{t0}, 4, v{t0}")
        A.e(f"v_lshl_add_u32 v{t0}, v{g}, 13, v{t0}")
        A.e(f"v_add_u32 v{t0}, {pp*32768 - pp*1024}, v{t0}")
        A.e(f"v_add_u32 v{vWd+pp}, s{sT0}, v{t0}")
        if OPT["wlin"] == 2: A.e(f"v_lshlrev_b32 v{vWd+pp}, 4, v{L}")
        if OPT["wlin"] == 3:
            A.e(f"v_lshlrev_b32 v{vWd+pp}, 4, v{L}")
            A.e(f"v_add_u32 v{vWd+pp}, s{sW4}, v{vWd+pp}")
    A.e(f"s_mul_i32 s{sT0}, s{sQh}, {80*1152}")
    A.e(f"s_mul_i32 s{sT1}, s{sHs}, {8*1152}")
    A.e(f"s_add_u32 s{sT0}, s{sT0}, s{sT1}")
    A.e(f"v_lshrrev_b32 v{t1}, 3, v{L}")
    A.e(f"v_mul_u32_u24 v{t0}, 1152, v{t1}")
    A.e(f"v_and_b32 v{vXo}, 7, v{L}")
    A.e(f"v_xor_b32 v{vXo}, v{vXo}, v{t1}")
    A.e(f"v_lshl_add_u32 v{t0}, v{vXo}, 4, v{t0}")
    A.e(f"v_add_u32 v{vXo}, s{sT0}, v{t0}")
    A.e(f"s_mul_i32 s{sXm}, s{sQh}, 10240")
    A.e(f"s_add_u32 s{sXm}, s{sXm}, {L_X}")
    A.e(f"v_and_b32 v{t0}, 7, v{q}")
    A.e(f"v_xor_b32 v{t0}, v{t0}, v{g}")
    A.e(f"v_lshlrev_b32 v{t0}, 4, v{t0}")
    A.e(f"v_lshl_add_u32 v{t0}, v{q}, 7, v{t0}")
    A.e(f"v_add_u32 v{vXr}, s{sXm}, v{t0}")
    A.e(f"v_xor_b32 v{vXr+1}, 64, v{vXr}")
    A.e(f"v_add_u32 v{vXr+2}, {HB}, v{vXr}")
    A.e(f"v_add_u32 v{vXr+3}, {HB}, v{vXr+1}")
    A.e(f"s_lshl_b32 s{sT1}, s{sHs}, 10")
    A.e(f"s_add_u32 s{sXm}, s{sXm}, s{sT1}")
    A.e(f"s_lshr_b32 s{sT0}, s2, 3")
    A.e(f"s_lshl_b32 s{sT0}, s{sT0}, 2")
    A.e(f"s_add_u32 s{sT0}, s{sT0}, s{sWave}")
    A.e(f"s_mul_i32 s{sWarm}, s{sT0}, 11520")
    A.e(f"s_bfe_u32 s{sT1}, s2, 0x20001")
    A.e(f"s_mul_i32 s{sT1}, s{sT1}, {8*184320}")
    A.e(f"s_add_u32 s{sWarm}, s{sWarm}, s{sT1}")
    A.e(f"s_lshr_b32 s{sThr}, s{sT0}, 1")
    A.e(f"s_lshl_b32 s{sThr}, s{sThr}, 13")
    A.e(f"s_and_b32 s{sT1}, s2, 1")
    A.e(f"s_lshl_b32 s{sT1}, s{sT1}, 12")
    A.e(f"s_add_u32 s{sThr}, s{sThr}, s{sT1}")
    A.e(f"s_lshl_b32 s{sT1}, s{sQh}, 11")
    A.e(f"s_add_u32 s{sThr}, s{sThr}, s{sT1}")
    for t in range(4):
        A.e(f"v_add_u32 v{t0}, {4*t}, v{g}")
        A.e(f"v_xor_b32 v{t0}, v{t0}, v{q}")
        A.e(f"v_lshlrev_b32 v{t0}, 4, v{t0}")
        A.e(f"v_lshl_add_u32 v{t0}, v{q}, 8, v{t0}")
        A.e(f"v_add_u32 v{t0}, {L_K0}, v{t0}")
        A.e(f"v_add_u32 v{vKa+t}, s{sT3}, v{t0}")
    A.e(f"v_and_b32 v{t1}, 1, v{g}")
    A.e(f"v_lshl_add_u32 v{t1}, v{t1}, 2, v{r}")
    A.e(f"v_lshlrev_b32 v{t1}, 1, v{t1}")
    for T in range(8):
        A.e(f"v_lshrrev_b32 v{t0}, 1, v{c}")
        A.e(f"v_add_u32 v{t0}, {2*T}, v{t0}")
        A.e(f"v_xor_b32 v{t0}, v{t0}, v{t1}")
        A.e(f"v_lshlrev_b32 v{t0}, 4, v{t0}")
        A.e(f"v_lshl_add_u32 v{vVa+T}, v{g}, 2, v{r}")
        A.e(f"v_lshl_add_u32 v{t0}, v{vVa+T}, 8, v{t0}")
        A.e(f"v_and_b32 v{vVa+T}, 1, v{c}")
        A.e(f"v_lshl_add_u32 v{vVa+T}, v{vVa+T}, 3, v{t0}")
        A.e(f"v_add_u32 v{vVa+T}, s{sT3}, v{vVa+T}")
    for tt in range(4):
        A.e(f"v_xor_b32 v{t0}, {tt}, v{r}")
        A.e(f"v_lshl_add_u32 v{t0}, v{t0}, 2, v{c}")
        A.e(f"v_lshlrev_b32 v{t0}, 4, v{t0}")
        A.e(f"v_lshl_add_u32 v{t1}, v{g}, 3, v{r}")
        A.e(f"v_lshl_add_u32 v{vWa+tt}, v{t1}, 8, v{t0}")
        A.e(f"v_add_u32 v{vWa+tt}, s{sT3}, v{vWa+tt}")
    A.e(f"v_lshlrev_b32 v{vOo}, 4, v{L}")
    A.e(f"v_mul_u32_u24 v{t0}, {4*1152}, v{g}")
    A.e(f"v_lshl_add_u32 v{vWoL}, v{q}, 1, v{t0}")
    A.e(f"v_mov_b32 v{t0}, 0x3f803f80")
    for i in range(4):
        A.e(f"v_accvgpr_write_b32 a{aOne+i}, v{t0}")
    A.e(f"v_mov_b32 v{vT+5}, {f32bits(2.0**OPT['thr_log2'])}")
    A.e(f"s_mov_b32 s{sScale}, {f32bits(math.log2(math.e)/math.sqrt(128.0))}")
    A.e(f"s_bfe_u32 s{sT2}, s2, 0x20001")
    A.e(f"s_lshl_b32 s{sT2}, s{sT2}, 3")
    A.e(f"s_bfe_u32 s{sT3}, s2, 0x30003")
    A.e(f"s_add_u32 s{sT2}, s{sT2}, s{sT3}")
    A.e(f"s_and_b32 s{sT0}, s2, 1")
    A.e(f"s_lshl_b32 s{sT0}, s{sT0}, 2")
    A.e(f"s_lshr_b32 s{sT1}, s2, 6")
    A.e(f"s_add_u32 s{sT0}, s{sT0}, s{sT1}")
    A.e(f"s_lshl_b32 s{sU0}, s{sT2}, 5")
    A.e(f"s_lshl_b32 s{sT0}, s{sT0}, 2")
    A.e(f"s_add_u32 s{sU0}, s{sU0}, s{sT0}")
    A.e(f"s_add_u32 s{sU0}, s{sU0}, s{sHs}")
    A.e(f"s_mul_i32 s{sXq}, s{sT2}, 184320")
    for qt in range(1, 5):
        A.e(f"s_add_u32 s{sXq+qt}, s{sXq}, {qt*18432}")
    A.e(f"s_mov_b32 s{sU}, s{sU0}")
    A.e(f"s_mov_b32 s{sJob}, 0")
    A.e(f"s_mov_b32 s{sSlow}, 0")
    A.e(f"s_mov_b32 s{sFlag}, 0")
    A.e("s_waitcnt lgkmcnt(0)")
    mk_srd(A, sX, 64, 32*160*576*2)
    mk_srd(A, sK, 66, 134217728)
    mk_srd(A, sV, 68, 134217728)
    mk_srd(A, sWQ, 70, 576*4096*2)
    mk_srd(A, sWO, 72, 576*4096*2)
    mk_srd(A, sWS, 74, WS_USED)
    A.e(f"s_lshl_b32 s{sPf}, s2, 2")
    A.e(f"s_add_u32 s{sPf}, s{sPf}, s{sWave}")
    A.e(f"s_lshl_b32 s{sPf}, s{sPf}, 7")
    A.e(f"s_add_u32 s{sPf}, s{sPf}, 0x4000000")
    mark(A, real=True)
    mark(A)
    A.label("L_cold")
    unit_setup(A)
    A.e(f"v_lshrrev_b32 v{vE}, 4, v{vOo}")
    for i in range(3):
        A.e(f"v_add_u32 v{vE+1}, {64*i}, v{vE}")
        A.e(f"v_mul_u32_u24 v{vE+5}, 205, v{vE+1}")
        A.e(f"v_lshrrev_b32 v{vE+5}, 11, v{vE+5}")
        A.e(f"v_mul_u32_u24 v{vE+6}, 10, v{vE+5}")
        A.e(f"v_sub_u32 v{vE+1}, v{vE+1}, v{vE+6}")
        A.e(f"v_mul_u32_u24 v{vE+1}, 1152, v{vE+1}")
        A.e(f"v_lshl_add_u32 v{vE+2+i}, v{vE+5}, 6, v{vE+1}")
    A.e(f"v_and_b32 v{vE+1}, 31, v{vE}")
    A.e(f"v_lshrrev_b32 v{vE+5}, 5, v{vE}")
    A.e(f"v_lshlrev_b32 v{vE+5}, 19, v{vE+5}")
    A.e(f"v_lshl_add_u32 v{vE+5}, v{vE+1}, 6, v{vE+5}")
    A.vq = []
    qproj(A, True)
    A.e("s_branch L_att")
    B = Asm()
    attention(B)
    tailq = list(B.vq)
    A.label("L_warm")
    unit_setup(A)
    A.vq = tailq
    qproj(A, False)
    A.label("L_att")
    A.lines += B.lines
    A.e("s_cmp_lg_u64 s[62:63], 0")
    A.e(f"s_cselect_b32 s{sT0}, 1, 0")
    A.e(f"s_and_b32 s{sT1}, s{sJob}, 1")
    A.e(f"s_lshl_b32 s{sT0}, s{sT0}, s{sT1}")
    A.e(f"s_or_b32 s{sFlag}, s{sFlag}, s{sT0}")
    A.e(f"s_add_u32 s{sJob}, s{sJob}, 1")
    A.e(f"s_cmp_eq_u32 s{sJob}, 1")
    A.e("s_cbranch_scc0 L_notwarm")
    A.e(f"s_xor_b32 s{sU}, s{sU0}, 2")
    A.e("s_branch L_warm")
    A.label("L_notwarm")
    A.e(f"s_cmp_eq_u32 s{sJob}, 2")
    A.e("s_cbranch_scc0 L_noexch")
    A.e("s_waitcnt vmcnt(0) lgkmcnt(0)")
    A.e("s_barrier")
    A.e(f"v_mov_b32 v{vT}, s{sWave}")
    A.e(f"v_lshlrev_b32 v{vT}, 2, v{vT}")
    A.e(f"v_mov_b32 v{vT+1}, s{sFlag}")
    A.e(f"ds_write_b32 v{vT}, v{vT+1}")
    A.e("s_waitcnt lgkmcnt(0)")
    A.e("s_barrier")
    A.e(f"v_mov_b32 v{vT}, 0")
    A.e(f"ds_read_b128 v[{vE}:{vE+3}], v{vT}")
    A.e("s_waitcnt lgkmcnt(0)")
    A.e(f"v_or3_b32 v{vT+2}, v{vE}, v{vE+1}, v{vE+2}")
    A.e(f"v_or_b32 v{vT+2}, v{vT+2}, v{vE+3}")
    A.e("s_nop 0")
    A.e(f"v_readfirstlane_b32 s{sSlow}, v{vT+2}")
    A.e("s_nop 3")
    A.e("s_barrier")
    mark(A)
    mark(A, real=True)
    A.label("L_noexch")
    A.e(f"s_and_b32 s{sT0}, s{sSlow}, {0 if OPT['nofb'] else 3}")
    A.e(f"s_cmp_eq_u32 s{sT0}, 0")
    A.e("s_cbranch_scc1 L_a_done")
    A.e(f"s_and_b32 s{sT1}, s{sSlow}, 1")
    A.e(f"s_xor_b32 s{sT1}, s{sT1}, 1")
    A.e(f"s_lshl_b32 s{sT2}, s{sT1}, 1")
    A.e(f"s_xor_b32 s{sU}, s{sU0}, s{sT2}")
    A.e(f"s_add_u32 s{sT1}, s{sT1}, 1")
    A.e(f"s_andn2_b32 s{sSlow}, s{sSlow}, s{sT1}")
    A.e(f"s_or_b32 s{sSlow}, s{sSlow}, 4")
    A.e("s_waitcnt vmcnt(0) lgkmcnt(0)")
    A.e("s_barrier")
    A.e("s_branch L_cold")
    A.label("L_a_done")
    A.e("s_endpgm")

def kernel_b(A):
    ST = 5
    A.lines.append(".p2align 8")
    A.label("oproj_kernel")
    A.e("s_cmp_ge_u32 s2, 256")
    A.e("s_cbranch_scc1 L_b_done")
    A.e("s_load_dwordx2 s[4:5], s[0:1], 40")
    A.e("s_load_dwordx2 s[6:7], s[0:1], 56")
    A.e("v_lshrrev_b32 v1, 6, v0")
    A.e("v_and_b32 v2, 63, v0")
    A.e("s_nop 0")
    A.e("v_readfirstlane_b32 s3, v1")
    A.e("v_lshlrev_b32 v3, 4, v2")
    A.e("s_and_b32 s16, s2, 7")
    A.e("s_lshl_b32 s16, s16, 3")
    A.e("s_lshr_b32 s17, s2, 5")
    A.e("s_add_u32 s16, s16, s17")
    A.e("s_lshr_b32 s17, s2, 3")
    A.e("s_and_b32 s17, s17, 3")
    A.e("s_lshl_b32 s18, s3, 15")
    A.e(f"s_mul_i32 s20, s16, {5*131072}")
    A.e("s_add_u32 s20, s20, s18")
    for qt in range(1, 5):
        A.e(f"s_add_u32 s{20+qt}, s20, {qt*131072}")
    A.e(f"s_mul_i32 s25, s17, {9*131072}")
    A.e("s_add_u32 s25, s25, s18")
    A.e(f"s_add_u32 s25, s25, {WOT}")
    for i in range(1, 9):
        A.e(f"s_add_u32 s{25+i}, s25, {i*131072}")
    A.e("s_waitcnt lgkmcnt(0)")
    mk_srd(A, 8, 6, WS_USED)
    mk_srd(A, 12, 4, 32*160*576*2)
    def sreg(st, i):
        return (v(8 + 56*st + 4*i, 4) if st < 4 else a(180 + 4*i, 4))
    vo = [235, 4, 5, 6, 7, 232, 233, 234]
    if OPT["rot"] == 1: A.e("s_and_b32 s19, s2, 7")
    elif OPT["rot"] == 2:
        A.e("s_lshr_b32 s19, s2, 5")
        A.e("s_and_b32 s19, s19, 1")
        A.e("s_add_u32 s19, s19, s2")
    else: A.e("s_mov_b32 s19, 0")
    for g in range(8):
        A.e(f"s_add_u32 s18, s19, {g}")
        A.e("s_and_b32 s18, s18, 7")
        A.e("s_lshl_b32 s18, s18, 12")
        A.e(f"v_add_u32 v{vo[g]}, s18, v3")
    def loads(s):
        st = s % ST
        out = []
        order = [0, 5, 1, 2, 3, 4, 6, 7, 8, 9, 10, 11, 12, 13]
        for i in order:
            out.append((f"buffer_load_dwordx4 {sreg(st, i)}, v{vo[s//4]}, s[8:11], s{20+i} offen offset:{(s%4)*1024}{FL[OPT['bnt'] if i < 5 else OPT['wnt']]}", f"L{s}"))
        return out
    A.vq = []
    def bases():
        for w in range(4):
            A.e(f"s_cmp_gt_u32 s3, {w}")
            A.e(f"s_cselect_b32 s18, 1, 0")
            A.e(f"s_sub_u32 s18, s3, s18")
            A.e(f"s_mul_i32 s18, s18, 12288")
            A.e(f"s_add_u32 s18, s18, {w*36864}")
            A.e(f"s_cmp_eq_u32 s3, {w}")
            A.e(f"s_cselect_b32 s18, 147456, s18")
            A.e(f"v_add_u32 v{236+w}, s18, v3")
    A.e(f"s_lshl_b32 s{sPf}, s2, 2")
    A.e(f"s_add_u32 s{sPf}, s{sPf}, s3")
    A.e(f"s_lshl_b32 s{sPf}, s{sPf}, 7")
    A.e(f"s_add_u32 s{sPf}, s{sPf}, 0x4100000")
    mark(A, 240, 8, real=True)
    mark(A, 240, 8)
    for s in range(ST - 1):
        emit_list(A, loads(s))
    if OPT["ept"]: bases()
    wr = [(f"ds_write_b128 v{236 + ti%4}, {a(4*ti,4)} offset:{(ti//4)*1024}", None) for ti in range(45)]
    def last(w):
        s = 31
        order = [ti for ti in range(45) if ti % 4 != w] + [ti for ti in range(45) if ti % 4 == w]
        mf = []
        for ti in order:
            i, qt = ti // 5, ti % 5
            d = a(4*ti, 4)
            mf.append(f"{MF} {d}, {sreg(s%ST, 5+i)}, {sreg(s%ST, qt)}, {d}")
        nw = len([ti for ti in order if ti % 4 != w])
        fill = {}
        spread(fill, [[wr[ti]] for ti in order[:nw]], list(range(3, 3 + nw)))
        A.weave(mf, fill)
        A.e("s_nop 7")
        A.e("s_nop 7")
    for s in range(32 if OPT["ept"] < 2 else 31):
        A.wait([f"L{s}"])
        if s == 0: mark(A, 240, 8)
        mf = []
        for i in range(9):
            for qt in range(5):
                d = a(4*(i*5+qt), 4)
                mf.append(f"{MF} {d}, {sreg(s%ST, 5+i)}, {sreg(s%ST, qt)}, {'0' if s == 0 else d}")
        fill = {}
        if s + ST - 1 < 32:
            spread(fill, [[x] for x in loads(s + ST - 1)], list(range(1, 45, 3)))
        if s == 31 and OPT["ept"]:
            spread(fill, [[x] for x in wr[:41]], list(range(4, 45)))
        A.weave(mf, fill)
    A.e("s_nop 7")
    if OPT["ept"] == 1:
        A.e("s_nop 7")
        emit_list(A, wr[41:])
    mark(A, 240, 8)
    for w in range(4 if not OPT["ept"] else 0):
        A.e(f"s_cmp_eq_u32 s3, {w}")
        A.e(f"s_cbranch_scc1 L_b_skipw{w}")
        A.e(f"s_cmp_gt_u32 s3, {w}")
        A.e(f"s_cselect_b32 s18, 1, 0")
        A.e(f"s_sub_u32 s18, s3, s18")
        A.e(f"s_mul_i32 s18, s18, 12288")
        A.e(f"s_add_u32 s18, s18, {w*36864}")
        A.e("v_add_u32 v4, s18, v3")
        for n, ti in enumerate([ti for ti in range(45) if ti % 4 == w]):
            A.e(f"ds_write_b128 v4, {a(4*ti,4)} offset:{n*1024}")
        A.label(f"L_b_skipw{w}")
    A.e("v_and_b32 v5, 15, v2")
    A.e("v_mul_u32_u24 v5, 1152, v5")
    A.e("v_lshrrev_b32 v6, 4, v2")
    A.e("v_lshl_add_u32 v5, v6, 3, v5")
    A.e(f"s_mul_i32 s18, s16, {80*1152}")
    A.e("s_mul_i32 s19, s17, 288")
    A.e("s_add_u32 s18, s18, s19")
    for qt in range(5):
        A.e(f"s_add_u32 s{20+qt}, s18, {qt*16*1152}")
    A.e("s_mul_i32 s18, s3, 36864")
    A.e("v_add_u32 v232, s18, v3")
    for w in range(4):
        A.e(f"s_cmp_lg_u32 s3, {w}")
        A.e(f"s_cbranch_scc1 L_b_skipr{w}")
        tis = [ti for ti in range(45) if ti % 4 == w]
        if OPT["ept"] == 2:
            A.e("s_waitcnt vmcnt(0)")
            last(w)
        for n, ti in enumerate(tis):
            for r in range(4):
                A.e(f"v_accvgpr_read_b32 v{160+4*n+r}, a{4*ti+r}")
        A.e("s_waitcnt lgkmcnt(0)")
        A.e("s_barrier")
        def rdt(n):
            if n < len(tis):
                for k in range(3):
                    A.e(f"ds_read_b128 {v(8 + 12*n + 4*k, 4)}, v232 offset:{(k*12+n)*1024}")
        for n in range(5): rdt(n)
        for n, ti in enumerate(tis):
            i, qt = ti // 5, ti % 5
            A.e(f"s_waitcnt lgkmcnt({3*min(4, len(tis)-1-n)})")
            rdt(n + 5)
            for r in range(4):
                A.e(f"v_add_f32 v{160+4*n+r}, v{160+4*n+r}, v{8+12*n+r}")
                A.e(f"v_add_f32 v{8+12*n+4+r}, v{8+12*n+4+r}, v{8+12*n+8+r}")
            for r in range(4):
                A.e(f"v_add_f32 v{160+4*n+r}, v{160+4*n+r}, v{8+12*n+4+r}")
            A.e(f"v_cvt_pk_bf16_f32 v{8+12*n}, v{160+4*n}, v{160+4*n+1}")
            A.e(f"v_cvt_pk_bf16_f32 v{8+12*n+1}, v{160+4*n+2}, v{160+4*n+3}")
            A.e(f"buffer_store_dwordx2 {v(8+12*n,2)}, v5, s[12:15], s{20+qt} offen offset:{32*i}{FL[OPT['ont']]}")
        A.label(f"L_b_skipr{w}")
    mark(A, 240, 8)
    mark(A, 240, 8, real=True)
    A.label("L_b_done")
    A.e("s_endpgm")

def kd(name, vg, acc):
    return f""".amdhsa_kernel {name}
  .amdhsa_next_free_vgpr {vg}
  .amdhsa_next_free_sgpr 96
  .amdhsa_accum_offset {acc}
  .amdhsa_group_segment_fixed_size 0
  .amdhsa_kernarg_size 64
  .amdhsa_user_sgpr_count 2
  .amdhsa_user_sgpr_kernarg_segment_ptr 1
  .amdhsa_system_sgpr_workgroup_id_x 1
.end_amdhsa_kernel
"""

def main():
    A = Asm()
    kernel_a(A)
    kernel_b(A)
    head = f"""; MHA block with KV cache: attn_kernel (Q-proj + attention -> ws), oproj_kernel (O-proj). Generated by work/gen.py
; @launch kernel=attn_kernel grid=(256,1,1) block=(256,1,1) lds=163840
; @launch kernel=oproj_kernel grid=(256,1,1) block=(256,1,1) lds=163840
.amdgcn_target "amdgcn-amd-amdhsa--gfx950"
.text
.globl attn_kernel
.type attn_kernel,@function
.globl oproj_kernel
.type oproj_kernel,@function
"""
    tail = '.section .rodata,"a"\n.p2align 6\n' + kd("attn_kernel", 512, 256) + ".p2align 6\n" + kd("oproj_kernel", 512, 256)
    open(sys.argv[1], "w").write(head + "\n".join(A.lines) + "\n" + tail)

main()
```

```python
import sys, struct, math

NAME = "standalone__mha_block_cached__near_ridge"
OPT = dict(nt=1, thr_log2=24, prof=0, map=0, nox=0, wlin=0, nowd=0, nord=0, nofb=0, nokv=0, nobar=0, xlin=0, ntw=0, ntx=0, warm=0, ntwarm=0, kl=1, vs=1, deep=1, ost=0, xoob=0, rot=0, qrot=0, bnt=0, wnt=0, wst=0, ont=0, ept=2, vreg=2, vst=5, cst=3, cs=0, wsn=0, krot=0)
for a in sys.argv[2:]:
    k, v = a.split("=")
    OPT[k] = int(v)

def f32bits(x):
    return struct.unpack("<I", struct.pack("<f", x))[0]

class Asm:
    def __init__(self):
        self.lines = []
        self.vq = []
    def e(self, s):
        self.lines.append("  " + s)
    def label(self, s):
        self.lines.append(s + ":")
    def c(self, s):
        self.lines.append("  ; " + s)
    def vm(self, s, tag):
        self.e(s)
        self.vq.append(tag)
    def vmn(self, tags):
        last = -1
        for i, t in enumerate(self.vq):
            if t in tags:
                last = i
        if last < 0:
            return None
        n = len(self.vq) - 1 - last
        self.vq = self.vq[last + 1:]
        return min(n, 63)
    def wait(self, tags=(), lgkm=None, vm0=False):
        n = self.vmn(tags) if tags else None
        if vm0:
            n = 0
            self.vq = []
        s = "s_waitcnt"
        if n is not None:
            s += f" vmcnt({n})"
        if lgkm is not None:
            s += f" lgkmcnt({lgkm})"
        if s != "s_waitcnt":
            self.e(s)
    def weave(self, mf, fill):
        for i, m in enumerate(mf):
            self.e(m)
            for (s, tag) in fill.get(i, []):
                self.item(s, tag)
    def item(self, s, tag):
        if s == "WAIT":
            self.wait(tag)
        elif tag is None:
            self.e(s)
        else:
            self.vm(s, tag)

def v(i, n=1):
    return f"v{i}" if n == 1 else f"v[{i}:{i+n-1}]"
def a(i, n=1):
    return f"a{i}" if n == 1 else f"a[{i}:{i+n-1}]"
MF = "v_mfma_f32_16x16x32_bf16"

OWS = 0
WOT = 320 * 128 * 1024
WS_USED = WOT + 36 * 128 * 1024
if OPT["prof"]: WS_USED = 0x5000000
sPf = 78
OOB = 0x7F000000

vKd = 1; vVd = 5; vWd = 7; vXo = 11; vKa = 12; vVa = 16; vWa = 24; vOo = 28; vWoL = 29
vT = 30
vQ = 36; vX = 36; vAcc = 92
vKf = 116; vS = 180; vP = 196; vC = 216; vE = 236
aO = 0; aVf = 160; aWf = 160; aL = 224; aOne = 244
L_W = [0, 8192, 16384]
L_X = 24576
sXm = 47; sWarm = 49
vXr = 252
sM4 = 79; sQh = 80; sHs = 81; HB = 81920
L_V = [24576, 32768, 40960, 16384]
L_K0 = 49152
sX, sK, sV, sWQ, sWS, sWO = 8, 12, 16, 20, 24, 28
sW4 = 32; sU = 33; sKb = 34; sKn = 35; sWb = 36; sXq = 37; sOb = 42; sWoG = 43; sWoS = 45
sJob = 46; sScale = 48; sT0 = 50; sT1 = 51; sWn = 52; sFlag = 53; sU0 = 54; sWave = 55; sSlow = 56; sThr = 57
sT2 = 58; sT3 = 59
NT = {0: "", 1: " nt", 2: " sc0 sc1", 3: " sc1", 4: " sc0 sc1 nt", 5: " sc1 nt", 6: " sc0 nt"}[OPT["nt"]]
NTW = " nt" if OPT["ntw"] else ""
FL = {0: "", 1: " nt", 2: " sc0 sc1", 3: " sc1", 4: " sc0 sc1 nt", 5: " sc1 nt", 6: " sc0 nt"}
OSTF = FL[OPT["ost"]]; OSTF_OLD = ""

def mark(A, t0=30, srd=24, real=False, lvl=1):
    if not OPT["prof"]: return
    if not real and srd == 24 and OPT["prof"] != lvl: return
    A.e("s_memrealtime s[76:77]" if real else "s_memtime s[76:77]")
    A.e("s_waitcnt lgkmcnt(0)")
    A.e(f"v_mov_b32 v{t0}, s76")
    A.e(f"v_mov_b32 v{t0+1}, s77")
    A.e(f"v_mov_b32 v{t0+2}, 0")
    A.vm(f"buffer_store_dwordx2 v[{t0}:{t0+1}], v{t0+2}, s[{srd}:{srd+3}], s{sPf} offen", "PF")
    A.e(f"s_add_u32 s{sPf}, s{sPf}, 8")

sRot = 82
def kv_addr(base, j):
    if not OPT["krot"]: return f"s_add_u32 s{sT0}, s{base}, {j*8192}"
    return (f"s_add_u32 s{sT0}, s{sRot}, {j*8192}\n  s_and_b32 s{sT0}, s{sT0}, 0x1ffff\n  s_add_u32 s{sT0}, s{sT0}, s{base}")
def dma_kv(kind, jj, pieces=(0, 1, 2, 3)):
    base = sKb if jj < 16 else sKn
    j = jj % 16
    slot = (L_K0 + 8192 * (jj % 4)) if kind == "K" else L_V[jj % 4]
    out = [(f"s_add_u32 m0, s{sM4}, {slot}", None),
           (kv_addr(base, j), None)]
    for pp in pieces:
        vo = vKd + pp if kind == "K" else vVd + (pp & 1)
        r = sK if kind == "K" else sV
        if OPT["nokv"]: out.append(("s_nop 0", None)); continue
        out.append((f"buffer_load_dwordx4 v{vo}, s[{r}:{r+3}], s{sT0} offen offset:{pp*1024}{NT} lds", f"{kind}{jj}"))
    return out

PARK = {("V",0): 40, ("V",1): 56, ("V",2): 72, ("V",3): 88, ("K",4): 112, ("K",5): 128, ("V",4): 144}
vPk = 87
def park_ld(kind, jj):
    out = [("s_nop 0", None), (kv_addr(sKb, jj), None)]
    for pp in range(4):
        vo = vKd + pp if kind == "K" else vVd + (pp & 1)
        r = sK if kind == "K" else sV
        out.append((f"buffer_load_dwordx4 {a(PARK[(kind,jj)] + 4*pp, 4)}, v{vo}, s[{r}:{r+3}], s{sT0} offen offset:{pp*1024}{NT}", "PK" if OPT["vreg"] < 3 else f"P{kind}{jj}"))
    return out
def park_wr(kind, jj, vb):
    slot = (L_K0 + 8192 * (jj % 4)) if kind == "K" else L_V[jj % 4]
    return [(f"ds_write_b128 v{vb}, {a(PARK[(kind,jj)] + 4*pp, 4)} offset:{slot + pp*1024}", None) for pp in range(4)]

def dma_w(t, nxt=False, slot=None):
    base = sWn if nxt else sWb
    out = [(f"s_add_u32 m0, s{sM4}, {L_W[t%3] if slot is None else slot}", None),
           (f"s_add_u32 s{sT1}, s{base}, {(t*8192 if OPT['wlin']==3 else 0) if OPT['wlin'] else t*262144}", None)]
    for pp in range(4):
        if OPT["nowd"]: out.append(("s_nop 0", None)); continue
        out.append((f"buffer_load_dwordx4 v{vWd+pp}, s[{sWQ}:{sWQ+3}], s{sT1} offen offset:{pp*1024}{NTW} lds", f"W{t}"))
    return out

NTX = " nt" if OPT["ntx"] else ""
def xfrag(t, qt):
    o = 8*qt + 4*(t % 2)
    return v(36 + o, 4) if (t//2) % 2 == 0 else a(o, 4)
def ld_x(p, qt):
    po = 0 if OPT["xlin"] else 128*p
    return [(f"s_add_u32 m0, s{sXm}, {(p%2)*HB + qt*2048}", None), (f"s_add_u32 s{sT1}, s{sXq+qt}, {po}", None),
            (f"buffer_load_dwordx4 v{vXo}, s[{sX}:{sX+3}], s{sT1} offen{NTX} lds", f"X{p}")]
def rd_x(p):
    return [(f"ds_read_b128 {xfrag(2*p+ks, qt)}, v{vXr + 2*(p%2) + ks} offset:{qt*2048}", None) for ks in range(2) for qt in range(5)]

def rd_w(t, slot):
    out = []
    for T in range(8):
        for hb in range(2):
            out.append((f"ds_read_b64_tr_b16 {a(aWf + 32*(t%2) + 4*T + 2*hb, 2)}, v{(vWa if slot < L_K0 else 88) + T//2} offset:{slot % L_K0 + 8*(T%2) + 1024*hb}", None))
    return out

def rd_k(j):
    return [(f"ds_read_b128 {v(vKf + 32*(j%2) + 16*aa + 4*t, 4)}, v{vKa+t} offset:{8192*(j%4) + 4096*aa}", None)
            for aa in range(2) for t in range(4)]

def rd_v(j):
    return [(f"ds_read_b64_tr_b16 {a(aVf + 32*(j%2) + 4*T + 2*hb, 2)}, v{vVa+T} offset:{L_V[j%4] + 4096*hb}", None)
            for T in range(8) for hb in range(2)]

def spread(fill, items, slots):
    for k, grp in enumerate(items):
        fill.setdefault(slots[k], []).extend(grp)

def emit_list(A, lst):
    for s, tag in lst:
        A.item(s, tag)

def qproj(A, cold):
    A.c("---- Q-proj " + ("cold" if cold else "warm"))
    N = 18
    deep = cold and OPT["deep"]
    R7 = L_W + [L_K0 + 8192*i for i in range(4)]
    def wsl(t):
        if not deep: return L_W[t % 3]
        if t == N - 1: return L_W[0]
        return R7[t % 7]
    wiss = {}
    for t in range(3, N):
        if not deep: st = t - 3
        elif t == N - 1: st = N - 4
        else: st = max((t - 3)//2, t - 5)
        wiss.setdefault(st, []).append(t)
    kiss = {N-8+j: j for j in range(4)} if deep else ({3+2*j: j for j in range(4)} if (cold and OPT["kl"]) else {})
    if deep:
        for i in range(4): A.e(f"v_add_u32 v{88+i}, {L_K0}, v{vWa+i}")
    piss = {}
    if OPT["vreg"]:
        assert not deep
        ext = [("K",4), ("K",5), ("V",4)] if OPT["vreg"] == 2 else []
        if cold:
            seq = [("K",0), ("K",1), ("V",0), ("K",2), ("V",1), ("K",3), ("V",2), ("V",3)] + ext
            kiss = {OPT["cst"]+i: x[1] for i, x in enumerate(seq) if x not in PARK}
            piss = {OPT["cst"]+i: x for i, x in enumerate(seq) if x in PARK}
        else:
            piss = {OPT["vst"]+i: x for i, x in enumerate([("V",j) for j in range(4)] + ext)}
        if OPT["vreg"] == 3:
            T7 = [("V",0), ("V",1), ("V",2), ("V",3), ("K",4), ("K",5), ("V",4)]
            CS = [[3,5,7,9, 11,13,14,15,16,17,17], [3,5,7,9, 14,14,15,15,16,16,17], [2,4,6,8, 10,12,14,14,15,15,16]][OPT["cs"]]
            WS = [[5,8,11,14,15,16,17], [14,14,15,15,16,16,17], [4,7,10,13,14,14,15], [6,10,14,14,15,15,16]][OPT["wsn"]]
            piss = {}
            if cold: kiss = {CS[j]: j for j in range(4)}
            for st, x in zip(CS[4:] if cold else WS, T7): piss.setdefault(st, []).append(x)
        else:
            assert max(piss) <= 13
            piss = {k: [x] for k, x in piss.items()}
        A.e(f"v_add_u32 v{vPk}, s{sM4}, v{vOo}")
    if cold:
        for qt in range(5): emit_list(A, ld_x(0, qt))
        emit_list(A, dma_w(0))
        if OPT["warm"]:
            ntw = " nt" if OPT["ntwarm"] else ""
            for i in range(5):
                if i < 3: A.vm(f"buffer_load_dword v76, v{vE+2+i}, s[{sX}:{sX+3}], s{sWarm} offen{ntw}", "WU")
                A.e(f"s_add_u32 s{sT1}, s{sThr}, {i*1048576}")
                A.vm(f"buffer_load_dword v77, v{vE+5}, s[{sWQ}:{sWQ+3}], s{sT1} offen{ntw}", "WU")
        emit_list(A, dma_w(1))
        for qt in range(5): emit_list(A, ld_x(1, qt))
        emit_list(A, dma_w(2))
        if not kiss:
            for jj in range(4): emit_list(A, dma_kv("K", jj))
    ml = 3 if cold else 2
    mark(A, lvl=ml)
    A.wait(["W0", "X0"])
    A.e("s_barrier")
    emit_list(A, rd_w(0, wsl(0)))
    emit_list(A, rd_x(0))
    for t in range(18):
        A.wait([f"W{t+1}"] + ([f"X{t//2+1}"] if t % 2 else []) + (["PK"] if t == 16 else []), lgkm=0)
        A.e("s_barrier")
        if t % 2 == 0: mark(A, lvl=ml)
        mf = []
        for T in range(8):
            for qt in range(5):
                f = (T//2)*5 + qt
                d = v(vAcc + 8*f + 4*(T%2), 4)
                mf.append(f"{MF} {d}, {a(aWf + 32*(t%2) + 4*T, 4)}, {xfrag(t, qt)}, {'0' if t == 0 else d}")
        fill = {}
        groups = []
        p = t//2 + 2
        if p <= 8:
            for qt in ((0, 1, 2) if t % 2 == 0 else (3, 4)): groups.append(ld_x(p, qt))
        ws_ = [dma_w(x, slot=wsl(x)) for x in wiss.get(t, [])]
        if t in kiss: ws_.append(dma_kv("K", kiss[t]))
        for x in piss.get(t, []): ws_.append(park_ld(*x))
        for w in ws_:
            groups += [w[0:3], [w[3]], [w[4]], [w[5]]]
        for vj in ({16: (0,), 17: (1,)} if (OPT["vs"] and not OPT["vreg"]) else {16: (0, 1, 2), 17: (3,)}).get(t, ()):
            if OPT["vreg"] == 3: continue
            if OPT["vreg"]:
                groups += [[x] for x in park_wr("V", vj, vPk)]
                continue
            w = dma_kv("V", vj)
            groups += [w[0:3], [w[3]], [w[4]], [w[5]]]
        rds = [[r] for r in rd_w(t+1, wsl(t+1))] if t + 1 <= 17 else []
        if t % 2 == 1 and t//2 + 1 <= 8:
            xr = [[r] for r in rd_x(t//2 + 1)]
            spread(fill, xr, list(range(3, 33, 3)))
        spread(fill, rds, list(range(0, 32, 2)))
        spread(fill, groups, list(range(1, 40, 3)) if len(groups) > 7 else list(range(1, 36, 5)))
        A.weave(mf, fill)
    if OPT["vreg"] == 3:
        A.wait(["PV0"])
        emit_list(A, park_wr("V", 0, vPk))
    mark(A, lvl=ml)
    A.e("s_nop 7")
    for f in range(20):
        b = vAcc + 8*f
        for i in range(8):
            A.e(f"v_mul_f32 v{b+i}, s{sScale}, v{b+i}")
        for i in range(4):
            A.e(f"v_cvt_pk_bf16_f32 v{vQ+4*f+i}, v{b+2*i}, v{b+2*i+1}")
    mark(A, lvl=ml)

def qk_mf(j, qt, sb, czero=False):
    mf = []
    for t in range(4):
        for aa in range(2):
            d = v(vS + 8*sb + 4*aa, 4)
            c = d if t > 0 else ("0" if czero else v(vC + 4*qt, 4))
            mf.append(f"{MF} {d}, {v(vKf + 32*(j%2) + 16*aa + 4*t, 4)}, {v(vQ + 4*(t*5+qt), 4)}, {c}")
    return mf

def pv_mf(j, qt):
    mf = []
    for T in range(8):
        d = a(aO + 32*qt + 4*T, 4)
        mf.append(f"{MF} {d}, {a(aVf + 32*(j%2) + 4*T, 4)}, {v(vP + 4*qt, 4)}, {'0' if j == 0 else d}")
    d = a(aL + 4*qt, 4)
    mf.append(f"{MF} {d}, {a(aOne, 4)}, {v(vP + 4*qt, 4)}, {'0' if j == 0 else d}")
    return mf

def softmax_ops(sb, qt):
    s = vS + 8*sb
    ex = [[(f"v_exp_f32 v{s+i}, v{s+i}", None)] for i in range(8)]
    cv = [(f"v_cvt_pk_bf16_f32 v{vP+4*qt+i}, v{s+2*i}, v{s+2*i+1}", None) for i in range(4)]
    return ex, cv

def lane_max(A, m, t):
    A.e(f"v_mov_b32 v{t}, v{m}")
    A.e("s_nop 1")
    A.e(f"v_permlane32_swap_b32 v{t}, v{m}")
    A.e("s_nop 1")
    A.e(f"v_max_f32 v{m}, v{t}, v{m}")
    A.e(f"v_mov_b32 v{t}, v{m}")
    A.e("s_nop 1")
    A.e(f"v_permlane16_swap_b32 v{t}, v{m}")
    A.e("s_nop 1")
    A.e(f"v_max_f32 v{m}, v{t}, v{m}")

def maxpass(A):
    A.c("---- max pass (fallback)")
    for qt in range(5):
        A.e(f"v_mov_b32 v{vE+qt}, 0xff800000")
    A.e(f"s_mov_b32 s{sT2}, s{sKb}")
    A.e(f"s_add_u32 s{sT3}, s{sKb}, 131072")
    A.label("L_maxloop")
    A.e("s_barrier")
    A.e(f"s_add_u32 m0, s{sM4}, {L_W[0]}")
    A.e("s_nop 0")
    for pp in range(4):
        A.e(f"buffer_load_dwordx4 v{vKd+pp}, s[{sK}:{sK+3}], s{sT2} offen offset:{pp*1024} lds")
    A.e("s_waitcnt vmcnt(0)")
    A.e("s_barrier")
    for t in range(4):
        A.e(f"v_subrev_u32 v{vT+t}, {L_K0}, v{vKa+t}")
    for aa in range(2):
        for t in range(4):
            A.e(f"ds_read_b128 {v(vKf + 16*aa + 4*t, 4)}, v{vT+t} offset:{L_W[0] + 4096*aa}")
    A.e("s_waitcnt lgkmcnt(0)")
    for qt in range(5):
        for m in qk_mf(0, qt, 0, czero=True): A.e(m)
        A.e("s_nop 7")
        s = vS
        for i in range(4):
            A.e(f"v_max3_f32 v{vE+qt}, v{s+2*i}, v{s+2*i+1}, v{vE+qt}")
        A.e("s_nop 3")
    A.e(f"s_add_u32 s{sT2}, s{sT2}, 8192")
    A.e(f"s_cmp_lt_u32 s{sT2}, s{sT3}")
    A.e("s_cbranch_scc1 L_maxloop")
    for qt in range(5):
        lane_max(A, vE+qt, vT)
        for i in range(4):
            A.e(f"v_sub_f32 v{vC+4*qt+i}, 0, v{vE+qt}")
    A.e("s_barrier")

def attention(A):
    A.c("---- attention prologue")
    A.vq = [f"V{j}" for j in range(2 if OPT["vs"] else 4) for _ in range(4)] if not OPT["vreg"] else []
    if OPT["vreg"] == 3: A.vq = ["PV"] + ["PE"]*12
    mark(A)
    if OPT["vs"] and not OPT["vreg"]: emit_list(A, dma_kv("V", 2))
    A.e(f"s_cmp_eq_u32 s{sSlow}, 0")
    A.e("s_cbranch_scc1 L_nomax")
    maxpass(A)
    A.label("L_nomax")
    emit_list(A, rd_k(0))
    emit_list(A, rd_k(1))
    A.wait(lgkm=8)
    for m in qk_mf(0, 0, 1, czero=True): A.e(m)
    for qt in range(5):
        sb = (qt + 1) % 2
        s = vS + 8*sb
        if qt == 2 and OPT["vs"] and not OPT["vreg"]: emit_list(A, dma_kv("V", 3))
        if qt < 4:
            for m in qk_mf(0, qt+1, qt % 2, czero=True): A.e(m)
        else:
            A.wait(["V0"])
            A.e("s_barrier")
            emit_list(A, rd_v(0))
            if OPT["vreg"] == 3:
                A.e(f"v_add_u32 v{vT+4}, s{sM4}, v{vOo}")
                A.wait(["PV"])
                for vj in (1, 2, 3): emit_list(A, park_wr("V", vj, vT+4))
        m = vT; t = vT + 1
        A.e(f"v_max3_f32 v{m}, v{s}, v{s+1}, v{s+2}")
        A.e(f"v_max3_f32 v{m}, v{s+3}, v{s+4}, v{m}")
        A.e(f"v_max3_f32 v{m}, v{s+5}, v{s+6}, v{m}")
        A.e(f"v_max_f32 v{m}, v{s+7}, v{m}")
        lane_max(A, m, t)
        A.e(f"v_sub_f32 v{m}, 0, v{m}")
        for i in range(4):
            A.e(f"v_cndmask_b32 v{vC+4*qt+i}, v{m}, v{vC+4*qt+i}, s[60:61]")
        for i in range(8):
            A.e(f"v_add_f32 v{s+i}, v{s+i}, v{vC+4*qt}")
        if qt < 4:
            ex, cv = softmax_ops(sb, qt)
            for g in ex: emit_list(A, g)
            A.e("s_nop 0")
            emit_list(A, cv)
    mark(A)
    for j in range(16):
        A.c(f"---- iter {j}")
        A.wait([f"K{j+2}", f"V{j+1}"] if j < 15 else [], lgkm=0)
        A.e("s_barrier")
        vmg = []
        def addkv(kind, jj):
            kv = dma_kv(kind, jj)
            vmg.extend([kv[0:3], [kv[3]], [kv[4]], [kv[5]]])
        if j >= 14:
            for qt in range(5): vmg.append(ld_x(j - 14, qt))
        if j == 0 and OPT["vreg"] == 2:
            A.e(f"v_add_u32 v{vT+4}, s{sM4}, v{vOo}")
            for x in (("K",4), ("K",5), ("V",4)): emit_list(A, park_wr(*x, vT+4))
        elif not (j == 0 and OPT["vreg"] == 3):
            if j == 0: addkv("K", 4)
            if j + 5 <= 19: addkv("K", j+5)
            if j + 4 <= 15: addkv("V", j+4)
        wt = {12: 0, 13: 1, 15: 2}.get(j)
        if wt is not None:
            w = dma_w(wt, nxt=True)
            vmg.extend([w[0:3], [w[3]], [w[4]], [w[5]]])
        if j == 14:
            for i in range(3):
                for e8 in range(8):
                    vmg.append([(f"buffer_load_ushort v{vKf + 8*i + e8}, v{vWoL}, s[{sWO}:{sWO+3}], s{sWoG + e8//4} offen offset:{(e8%4)*1152 + 32*i}", "G")])

        rds = []
        if j + 2 <= 15: rds += [[r] for r in rd_k(j+2)]
        if j + 1 <= 15: rds += [[r] for r in rd_v(j+1)]
        others = []
        i1 = i2 = 0
        while i1 < len(vmg) or i2 < len(rds):
            if i2 < len(rds): others.append(rds[i2]); i2 += 1
            if i1 < len(vmg): others.append(vmg[i1]); i1 += 1
        for qt in range(5):
            n = 5*j + qt
            if j == 0 and qt == 2 and OPT["vreg"] == 3:
                A.wait(["PE"])
                for x in (("K",4), ("K",5), ("V",4)): emit_list(A, park_wr(*x, vT+4))
            mf = (qk_mf(j+1, qt, n % 2) if j < 15 else []) + pv_mf(j, qt)
            fill = {}
            nm = len(mf)
            do_sm = (j < 15) or qt == 0
            free = list(range(nm))
            if do_sm:
                ex, cv = softmax_ops((n-1) % 2, (qt - 1) % 5)
                if nm == 17:
                    exs = [0, 2, 4, 6, 8, 10, 12, 13]; cvs = [14, 15]
                else:
                    exs = [0, 1, 2, 3, 4, 5, 6, 7]; cvs = [8, 8]
                spread(fill, ex, exs)
                if cvs[0] == 8: fill.setdefault(8, [])
                fill.setdefault(cvs[0], []).extend(cv[0:2])
                fill.setdefault(cvs[1], []).extend(cv[2:4])
                free = [s for s in range(nm) if s not in exs and s not in cvs]
                if not free: free = [8]
            rem = 5 - qt
            k = -(-len(others) // rem) if qt < 4 else len(others)
            k = max(k, min(len(others), len(free)))
            take, others = others[:k], others[k:]
            for idx, g in enumerate(take):
                fill.setdefault(free[idx % len(free)] if len(take) <= len(free) else free[idx * len(free) // len(take)], []).extend(g)
            A.weave(mf, fill)
    A.c("---- epilogue")
    mark(A)
    A.e("s_nop 7")
    A.e("s_mov_b64 s[62:63], 0")
    for qt in range(5):
        A.e(f"v_accvgpr_read_b32 v{vC+qt}, a{aL+4*qt}")
    for qt in range(5):
        A.e(f"v_cmp_nlt_f32 vcc, v{vC+qt}, v{vT+5}")
        A.e(f"v_rcp_f32 v{vC+qt}, v{vC+qt}")
        A.e("s_or_b64 s[62:63], s[62:63], vcc")
    k = 0
    for qt in range(5):
        for jp in range(4):
            tb = [vS, vS+8, vP, vP+8][k % 4]
            ob = vE + 4*(k % 4)
            k += 1
            for i in range(8):
                A.e(f"v_accvgpr_read_b32 v{tb+i}, a{aO + 32*qt + 8*jp + i}")
            for i in range(8):
                A.e(f"v_mul_f32 v{tb+i}, v{tb+i}, v{vC+qt}")
            for i in range(4):
                A.e(f"v_cvt_pk_bf16_f32 v{ob+i}, v{tb+2*i}, v{tb+2*i+1}")
            if jp == 0:
                A.e(f"s_add_u32 s{sT0}, s{sOb}, {qt*131072}")
            A.vm(f"buffer_store_dwordx4 {v(ob,4)}, v{vOo}, s[{sWS}:{sWS+3}], s{sT0} offen offset:{jp*1024}{OSTF}", "ST")
    A.wait(["G"])
    for i in range(3):
        for p in range(4):
            A.e(f"v_lshl_or_b32 v{vKf+32+4*i+p}, v{vKf+8*i+2*p+1}, 16, v{vKf+8*i+2*p}")
        A.e(f"s_add_u32 s{sT0}, s{sWoS}, {i*131072}")
        A.vm(f"buffer_store_dwordx4 {v(vKf+32+4*i,4)}, v{vOo}, s[{sWS}:{sWS+3}], s{sT0} offen{FL[OPT['wst']]}", "ST")
    mark(A)

def unit_setup(A):
    A.e(f"s_lshl_b32 s{sKb}, s{sU}, 17")
    A.e(f"s_xor_b32 s{sKn}, s{sKb}, 262144")
    A.e(f"s_and_b32 s{sT0}, s{sU}, 31")
    A.e(f"s_lshl_b32 s{sWb}, s{sT0}, 8")
    A.e(f"s_xor_b32 s{sWn}, s{sWb}, 512")
    if OPT["wlin"] == 3:
        A.e(f"s_mul_i32 s{sWb}, s{sWb}, 576")
        A.e(f"s_mul_i32 s{sWn}, s{sWn}, 576")
    A.e(f"s_cmp_eq_u32 s{sJob}, 0")
    A.e(f"s_cselect_b32 s{sKn}, s{sKn}, {OOB}")
    A.e(f"s_cselect_b32 s{sWn}, s{sWn}, {OOB}")
    A.e(f"s_lshr_b32 s{sT1}, s{sU}, 5")
    A.e(f"s_mul_i32 s{sT1}, s{sT1}, 10")
    A.e(f"s_mul_i32 s{sT2}, s{sQh}, 5")
    A.e(f"s_add_u32 s{sT1}, s{sT1}, s{sT2}")
    A.e(f"s_lshl_b32 s{sT1}, s{sT1}, 17")
    A.e(f"s_lshl_b32 s{sT0}, s{sT0}, 12")
    A.e(f"s_add_u32 s{sOb}, s{sT1}, s{sT0}")
    A.e(f"s_lshl_b32 s{sT0}, s{sU}, 1")
    A.e(f"s_add_u32 s{sT0}, s{sT0}, s{sQh}")
    A.e(f"s_lshr_b32 s{sT1}, s{sT0}, 4")
    A.e(f"s_and_b32 s{sT0}, s{sT0}, 15")
    A.e(f"s_mul_i32 s{sT2}, s{sT1}, {32*1152}")
    A.e(f"s_mul_i32 s{sT3}, s{sT0}, 96")
    A.e(f"s_add_u32 s{sWoG}, s{sT2}, s{sT3}")
    A.e(f"s_add_u32 s{sWoG+1}, s{sWoG}, {16*1152}")
    A.e(f"s_mul_i32 s{sT2}, s{sT0}, {3*131072}")
    A.e(f"s_lshl_b32 s{sT3}, s{sT1}, 10")
    A.e(f"s_add_u32 s{sT2}, s{sT2}, s{sT3}")
    A.e(f"s_add_u32 s{sWoS}, s{sT2}, {WOT}")
    A.e(f"s_cmp_lt_u32 s{sT0}, 12")
    A.e(f"s_cselect_b32 s{sWoG}, s{sWoG}, {OOB}")
    A.e(f"s_cselect_b32 s{sWoG+1}, s{sWoG+1}, {OOB}")
    A.e(f"s_cselect_b32 s{sWoS}, s{sWoS}, {OOB}")
    A.e(f"s_cmp_lg_u32 s{sSlow}, 0")
    A.e("s_cselect_b64 s[60:61], -1, 0")

def mk_srd(A, s, p, nbytes):
    A.e(f"s_mov_b32 s{s}, s{p}")
    A.e(f"s_and_b32 s{s+1}, s{p+1}, 0xffff")
    A.e(f"s_mov_b32 s{s+2}, {nbytes}")
    A.e(f"s_mov_b32 s{s+3}, 0x00020000")

def kernel_a(A):
    A.lines.append(".p2align 8")
    A.label("attn_kernel")
    A.e("s_cmp_ge_u32 s2, 256")
    A.e("s_cbranch_scc1 L_a_done")
    A.e("s_load_dwordx8 s[64:71], s[0:1], 0")
    A.e("s_load_dwordx2 s[72:73], s[0:1], 32")
    A.e("s_load_dwordx2 s[74:75], s[0:1], 56")
    L, g, q, r, c = vT, vT+1, vT+2, vT+3, vT+4
    A.e(f"v_lshrrev_b32 v{g}, 6, v0")
    A.e(f"v_and_b32 v{L}, 63, v0")
    A.e("s_nop 0")
    A.e(f"v_readfirstlane_b32 s{sWave}, v{g}")
    A.e(f"v_lshrrev_b32 v{g}, 4, v{L}")
    A.e(f"v_and_b32 v{q}, 15, v{L}")
    A.e(f"v_lshrrev_b32 v{r}, 2, v{q}")
    A.e(f"v_and_b32 v{c}, 3, v{L}")
    A.e(f"s_and_b32 s{sQh}, s{sWave}, 1")
    A.e(f"s_lshr_b32 s{sHs}, s{sWave}, 1")
    A.e(f"s_lshl_b32 s{sW4}, s{sQh}, 12")
    A.e(f"s_mul_i32 s{sT3}, s{sHs}, {HB}")
    A.e(f"s_add_u32 s{sM4}, s{sW4}, s{sT3}")
    if OPT["krot"] == 1:
        A.e(f"s_lshr_b32 s{sRot}, s2, 4")
        A.e(f"s_add_u32 s{sRot}, s{sRot}, s2")
        A.e(f"s_lshl_b32 s83, s{sHs}, 3")
        A.e(f"s_add_u32 s{sRot}, s{sRot}, s83")
    elif OPT["krot"] == 2:
        A.e(f"s_lshr_b32 s{sRot}, s2, 3")
        A.e(f"s_lshl_b32 s{sRot}, s{sRot}, 1")
        A.e(f"s_add_u32 s{sRot}, s{sRot}, s{sHs}")
    elif OPT["krot"] == 3:
        A.e(f"s_lshr_b32 s{sRot}, s2, 4")
        A.e(f"s_xor_b32 s{sRot}, s{sRot}, s2")
        A.e(f"s_lshl_b32 s83, s{sHs}, 3")
        A.e(f"s_add_u32 s{sRot}, s{sRot}, s83")
    elif OPT["krot"] == 4:
        A.e(f"s_lshl_b32 s83, s{sHs}, 3")
        A.e(f"s_add_u32 s{sRot}, s2, s83")
    elif OPT["krot"] == 5:
        A.e(f"s_lshl_b32 s{sRot}, s2, 1")
        A.e(f"s_add_u32 s{sRot}, s{sRot}, s{sHs}")
        A.e(f"s_mul_i32 s{sRot}, s{sRot}, 0x9e3779b1")
        A.e(f"s_lshr_b32 s{sRot}, s{sRot}, 28")
    elif OPT["krot"] == 6:
        A.e(f"s_lshl_b32 s{sRot}, s2, 1")
        A.e(f"s_add_u32 s{sRot}, s{sRot}, s{sHs}")
    if OPT["krot"]:
        A.e(f"s_and_b32 s{sRot}, s{sRot}, 15")
        A.e(f"s_lshl_b32 s{sRot}, s{sRot}, 13")
    t0, t1 = vE, vE+1
    for pp in range(4):
        A.e(f"v_add_u32 v{t0}, {4*pp}, v{g}")
        A.e(f"v_xor_b32 v{t0}, v{t0}, v{q}")
        A.e(f"v_lshlrev_b32 v{t0}, 4, v{t0}")
        A.e(f"v_lshl_add_u32 v{t0}, v{g}, 8, v{t0}")
        A.e(f"v_add_u32 v{vKd+pp}, s{sW4}, v{t0}")
    for p1 in range(2):
        A.e(f"v_add_u32 v{t0}, {4*p1}, v{g}")
        A.e(f"v_lshlrev_b32 v{t0}, 1, v{t0}")
        A.e(f"v_xor_b32 v{t0}, v{t0}, v{q}")
        A.e(f"v_lshlrev_b32 v{t0}, 4, v{t0}")
        A.e(f"v_lshl_add_u32 v{t0}, v{g}, 8, v{t0}")
        A.e(f"v_add_u32 v{vVd+p1}, s{sW4}, v{t0}")
    A.e(f"s_lshl_b32 s{sT0}, s{sQh}, 17")
    for pp in range(4):
        A.e(f"v_lshlrev_b32 v{t0}, 2, v{g}")
        A.e(f"v_xor_b32 v{t0}, v{t0}, v{q}")
        A.e(f"v_lshlrev_b32 v{t0}, 4, v{t0}")
        A.e(f"v_lshl_add_u32 v{t0}, v{g}, 13, v{t0}")
        A.e(f"v_add_u32 v{t0}, {pp*32768 - pp*1024}, v{t0}")
        A.e(f"v_add_u32 v{vWd+pp}, s{sT0}, v{t0}")
        if OPT["wlin"] == 2: A.e(f"v_lshlrev_b32 v{vWd+pp}, 4, v{L}")
        if OPT["wlin"] == 3:
            A.e(f"v_lshlrev_b32 v{vWd+pp}, 4, v{L}")
            A.e(f"v_add_u32 v{vWd+pp}, s{sW4}, v{vWd+pp}")
    A.e(f"s_mul_i32 s{sT0}, s{sQh}, {80*1152}")
    A.e(f"s_mul_i32 s{sT1}, s{sHs}, {8*1152}")
    A.e(f"s_add_u32 s{sT0}, s{sT0}, s{sT1}")
    A.e(f"v_lshrrev_b32 v{t1}, 3, v{L}")
    A.e(f"v_mul_u32_u24 v{t0}, 1152, v{t1}")
    A.e(f"v_and_b32 v{vXo}, 7, v{L}")
    A.e(f"v_xor_b32 v{vXo}, v{vXo}, v{t1}")
    A.e(f"v_lshl_add_u32 v{t0}, v{vXo}, 4, v{t0}")
    A.e(f"v_add_u32 v{vXo}, s{sT0}, v{t0}")
    A.e(f"s_mul_i32 s{sXm}, s{sQh}, 10240")
    A.e(f"s_add_u32 s{sXm}, s{sXm}, {L_X}")
    A.e(f"v_and_b32 v{t0}, 7, v{q}")
    A.e(f"v_xor_b32 v{t0}, v{t0}, v{g}")
    A.e(f"v_lshlrev_b32 v{t0}, 4, v{t0}")
    A.e(f"v_lshl_add_u32 v{t0}, v{q}, 7, v{t0}")
    A.e(f"v_add_u32 v{vXr}, s{sXm}, v{t0}")
    A.e(f"v_xor_b32 v{vXr+1}, 64, v{vXr}")
    A.e(f"v_add_u32 v{vXr+2}, {HB}, v{vXr}")
    A.e(f"v_add_u32 v{vXr+3}, {HB}, v{vXr+1}")
    A.e(f"s_lshl_b32 s{sT1}, s{sHs}, 10")
    A.e(f"s_add_u32 s{sXm}, s{sXm}, s{sT1}")
    A.e(f"s_lshr_b32 s{sT0}, s2, 3")
    A.e(f"s_lshl_b32 s{sT0}, s{sT0}, 2")
    A.e(f"s_add_u32 s{sT0}, s{sT0}, s{sWave}")
    A.e(f"s_mul_i32 s{sWarm}, s{sT0}, 11520")
    A.e(f"s_bfe_u32 s{sT1}, s2, 0x20001")
    A.e(f"s_mul_i32 s{sT1}, s{sT1}, {8*184320}")
    A.e(f"s_add_u32 s{sWarm}, s{sWarm}, s{sT1}")
    A.e(f"s_lshr_b32 s{sThr}, s{sT0}, 1")
    A.e(f"s_lshl_b32 s{sThr}, s{sThr}, 13")
    A.e(f"s_and_b32 s{sT1}, s2, 1")
    A.e(f"s_lshl_b32 s{sT1}, s{sT1}, 12")
    A.e(f"s_add_u32 s{sThr}, s{sThr}, s{sT1}")
    A.e(f"s_lshl_b32 s{sT1}, s{sQh}, 11")
    A.e(f"s_add_u32 s{sThr}, s{sThr}, s{sT1}")
    for t in range(4):
        A.e(f"v_add_u32 v{t0}, {4*t}, v{g}")
        A.e(f"v_xor_b32 v{t0}, v{t0}, v{q}")
        A.e(f"v_lshlrev_b32 v{t0}, 4, v{t0}")
        A.e(f"v_lshl_add_u32 v{t0}, v{q}, 8, v{t0}")
        A.e(f"v_add_u32 v{t0}, {L_K0}, v{t0}")
        A.e(f"v_add_u32 v{vKa+t}, s{sT3}, v{t0}")
    A.e(f"v_and_b32 v{t1}, 1, v{g}")
    A.e(f"v_lshl_add_u32 v{t1}, v{t1}, 2, v{r}")
    A.e(f"v_lshlrev_b32 v{t1}, 1, v{t1}")
    for T in range(8):
        A.e(f"v_lshrrev_b32 v{t0}, 1, v{c}")
        A.e(f"v_add_u32 v{t0}, {2*T}, v{t0}")
        A.e(f"v_xor_b32 v{t0}, v{t0}, v{t1}")
        A.e(f"v_lshlrev_b32 v{t0}, 4, v{t0}")
        A.e(f"v_lshl_add_u32 v{vVa+T}, v{g}, 2, v{r}")
        A.e(f"v_lshl_add_u32 v{t0}, v{vVa+T}, 8, v{t0}")
        A.e(f"v_and_b32 v{vVa+T}, 1, v{c}")
        A.e(f"v_lshl_add_u32 v{vVa+T}, v{vVa+T}, 3, v{t0}")
        A.e(f"v_add_u32 v{vVa+T}, s{sT3}, v{vVa+T}")
    for tt in range(4):
        A.e(f"v_xor_b32 v{t0}, {tt}, v{r}")
        A.e(f"v_lshl_add_u32 v{t0}, v{t0}, 2, v{c}")
        A.e(f"v_lshlrev_b32 v{t0}, 4, v{t0}")
        A.e(f"v_lshl_add_u32 v{t1}, v{g}, 3, v{r}")
        A.e(f"v_lshl_add_u32 v{vWa+tt}, v{t1}, 8, v{t0}")
        A.e(f"v_add_u32 v{vWa+tt}, s{sT3}, v{vWa+tt}")
    A.e(f"v_lshlrev_b32 v{vOo}, 4, v{L}")
    A.e(f"v_mul_u32_u24 v{t0}, {4*1152}, v{g}")
    A.e(f"v_lshl_add_u32 v{vWoL}, v{q}, 1, v{t0}")
    A.e(f"v_mov_b32 v{t0}, 0x3f803f80")
    for i in range(4):
        A.e(f"v_accvgpr_write_b32 a{aOne+i}, v{t0}")
    A.e(f"v_mov_b32 v{vT+5}, {f32bits(2.0**OPT['thr_log2'])}")
    A.e(f"s_mov_b32 s{sScale}, {f32bits(math.log2(math.e)/math.sqrt(128.0))}")
    A.e(f"s_bfe_u32 s{sT2}, s2, 0x20001")
    A.e(f"s_lshl_b32 s{sT2}, s{sT2}, 3")
    A.e(f"s_bfe_u32 s{sT3}, s2, 0x30003")
    A.e(f"s_add_u32 s{sT2}, s{sT2}, s{sT3}")
    A.e(f"s_and_b32 s{sT0}, s2, 1")
    A.e(f"s_lshl_b32 s{sT0}, s{sT0}, 2")
    A.e(f"s_lshr_b32 s{sT1}, s2, 6")
    A.e(f"s_add_u32 s{sT0}, s{sT0}, s{sT1}")
    A.e(f"s_lshl_b32 s{sU0}, s{sT2}, 5")
    A.e(f"s_lshl_b32 s{sT0}, s{sT0}, 2")
    A.e(f"s_add_u32 s{sU0}, s{sU0}, s{sT0}")
    A.e(f"s_add_u32 s{sU0}, s{sU0}, s{sHs}")
    A.e(f"s_mul_i32 s{sXq}, s{sT2}, 184320")
    for qt in range(1, 5):
        A.e(f"s_add_u32 s{sXq+qt}, s{sXq}, {qt*18432}")
    A.e(f"s_mov_b32 s{sU}, s{sU0}")
    A.e(f"s_mov_b32 s{sJob}, 0")
    A.e(f"s_mov_b32 s{sSlow}, 0")
    A.e(f"s_mov_b32 s{sFlag}, 0")
    A.e("s_waitcnt lgkmcnt(0)")
    mk_srd(A, sX, 64, 32*160*576*2)
    mk_srd(A, sK, 66, 134217728)
    mk_srd(A, sV, 68, 134217728)
    mk_srd(A, sWQ, 70, 576*4096*2)
    mk_srd(A, sWO, 72, 576*4096*2)
    mk_srd(A, sWS, 74, WS_USED)
    A.e(f"s_lshl_b32 s{sPf}, s2, 2")
    A.e(f"s_add_u32 s{sPf}, s{sPf}, s{sWave}")
    A.e(f"s_lshl_b32 s{sPf}, s{sPf}, 7")
    A.e(f"s_add_u32 s{sPf}, s{sPf}, 0x4000000")
    mark(A, real=True)
    mark(A)
    A.label("L_cold")
    unit_setup(A)
    A.e(f"v_lshrrev_b32 v{vE}, 4, v{vOo}")
    for i in range(3):
        A.e(f"v_add_u32 v{vE+1}, {64*i}, v{vE}")
        A.e(f"v_mul_u32_u24 v{vE+5}, 205, v{vE+1}")
        A.e(f"v_lshrrev_b32 v{vE+5}, 11, v{vE+5}")
        A.e(f"v_mul_u32_u24 v{vE+6}, 10, v{vE+5}")
        A.e(f"v_sub_u32 v{vE+1}, v{vE+1}, v{vE+6}")
        A.e(f"v_mul_u32_u24 v{vE+1}, 1152, v{vE+1}")
        A.e(f"v_lshl_add_u32 v{vE+2+i}, v{vE+5}, 6, v{vE+1}")
    A.e(f"v_and_b32 v{vE+1}, 31, v{vE}")
    A.e(f"v_lshrrev_b32 v{vE+5}, 5, v{vE}")
    A.e(f"v_lshlrev_b32 v{vE+5}, 19, v{vE+5}")
    A.e(f"v_lshl_add_u32 v{vE+5}, v{vE+1}, 6, v{vE+5}")
    A.vq = []
    qproj(A, True)
    A.e("s_branch L_att")
    B = Asm()
    attention(B)
    tailq = list(B.vq)
    A.label("L_warm")
    unit_setup(A)
    A.vq = tailq
    qproj(A, False)
    A.label("L_att")
    A.lines += B.lines
    A.e("s_cmp_lg_u64 s[62:63], 0")
    A.e(f"s_cselect_b32 s{sT0}, 1, 0")
    A.e(f"s_and_b32 s{sT1}, s{sJob}, 1")
    A.e(f"s_lshl_b32 s{sT0}, s{sT0}, s{sT1}")
    A.e(f"s_or_b32 s{sFlag}, s{sFlag}, s{sT0}")
    A.e(f"s_add_u32 s{sJob}, s{sJob}, 1")
    A.e(f"s_cmp_eq_u32 s{sJob}, 1")
    A.e("s_cbranch_scc0 L_notwarm")
    A.e(f"s_xor_b32 s{sU}, s{sU0}, 2")
    A.e("s_branch L_warm")
    A.label("L_notwarm")
    A.e(f"s_cmp_eq_u32 s{sJob}, 2")
    A.e("s_cbranch_scc0 L_noexch")
    A.e("s_waitcnt vmcnt(0) lgkmcnt(0)")
    A.e("s_barrier")
    A.e(f"v_mov_b32 v{vT}, s{sWave}")
    A.e(f"v_lshlrev_b32 v{vT}, 2, v{vT}")
    A.e(f"v_mov_b32 v{vT+1}, s{sFlag}")
    A.e(f"ds_write_b32 v{vT}, v{vT+1}")
    A.e("s_waitcnt lgkmcnt(0)")
    A.e("s_barrier")
    A.e(f"v_mov_b32 v{vT}, 0")
    A.e(f"ds_read_b128 v[{vE}:{vE+3}], v{vT}")
    A.e("s_waitcnt lgkmcnt(0)")
    A.e(f"v_or3_b32 v{vT+2}, v{vE}, v{vE+1}, v{vE+2}")
    A.e(f"v_or_b32 v{vT+2}, v{vT+2}, v{vE+3}")
    A.e("s_nop 0")
    A.e(f"v_readfirstlane_b32 s{sSlow}, v{vT+2}")
    A.e("s_nop 3")
    A.e("s_barrier")
    mark(A)
    mark(A, real=True)
    A.label("L_noexch")
    A.e(f"s_and_b32 s{sT0}, s{sSlow}, {0 if OPT['nofb'] else 3}")
    A.e(f"s_cmp_eq_u32 s{sT0}, 0")
    A.e("s_cbranch_scc1 L_a_done")
    A.e(f"s_and_b32 s{sT1}, s{sSlow}, 1")
    A.e(f"s_xor_b32 s{sT1}, s{sT1}, 1")
    A.e(f"s_lshl_b32 s{sT2}, s{sT1}, 1")
    A.e(f"s_xor_b32 s{sU}, s{sU0}, s{sT2}")
    A.e(f"s_add_u32 s{sT1}, s{sT1}, 1")
    A.e(f"s_andn2_b32 s{sSlow}, s{sSlow}, s{sT1}")
    A.e(f"s_or_b32 s{sSlow}, s{sSlow}, 4")
    A.e("s_waitcnt vmcnt(0) lgkmcnt(0)")
    A.e("s_barrier")
    A.e("s_branch L_cold")
    A.label("L_a_done")
    A.e("s_endpgm")

def kernel_b(A):
    ST = 5
    A.lines.append(".p2align 8")
    A.label("oproj_kernel")
    A.e("s_cmp_ge_u32 s2, 256")
    A.e("s_cbranch_scc1 L_b_done")
    A.e("s_load_dwordx2 s[4:5], s[0:1], 40")
    A.e("s_load_dwordx2 s[6:7], s[0:1], 56")
    A.e("v_lshrrev_b32 v1, 6, v0")
    A.e("v_and_b32 v2, 63, v0")
    A.e("s_nop 0")
    A.e("v_readfirstlane_b32 s3, v1")
    A.e("v_lshlrev_b32 v3, 4, v2")
    A.e("s_and_b32 s16, s2, 7")
    A.e("s_lshl_b32 s16, s16, 3")
    A.e("s_lshr_b32 s17, s2, 5")
    A.e("s_add_u32 s16, s16, s17")
    A.e("s_lshr_b32 s17, s2, 3")
    A.e("s_and_b32 s17, s17, 3")
    A.e("s_lshl_b32 s18, s3, 15")
    A.e(f"s_mul_i32 s20, s16, {5*131072}")
    A.e("s_add_u32 s20, s20, s18")
    for qt in range(1, 5):
        A.e(f"s_add_u32 s{20+qt}, s20, {qt*131072}")
    A.e(f"s_mul_i32 s25, s17, {9*131072}")
    A.e("s_add_u32 s25, s25, s18")
    A.e(f"s_add_u32 s25, s25, {WOT}")
    for i in range(1, 9):
        A.e(f"s_add_u32 s{25+i}, s25, {i*131072}")
    A.e("s_waitcnt lgkmcnt(0)")
    mk_srd(A, 8, 6, WS_USED)
    mk_srd(A, 12, 4, 32*160*576*2)
    def sreg(st, i):
        return (v(8 + 56*st + 4*i, 4) if st < 4 else a(180 + 4*i, 4))
    vo = [235, 4, 5, 6, 7, 232, 233, 234]
    if OPT["rot"] == 1: A.e("s_and_b32 s19, s2, 7")
    elif OPT["rot"] == 2:
        A.e("s_lshr_b32 s19, s2, 5")
        A.e("s_and_b32 s19, s19, 1")
        A.e("s_add_u32 s19, s19, s2")
    else: A.e("s_mov_b32 s19, 0")
    for g in range(8):
        A.e(f"s_add_u32 s18, s19, {g}")
        A.e("s_and_b32 s18, s18, 7")
        A.e("s_lshl_b32 s18, s18, 12")
        A.e(f"v_add_u32 v{vo[g]}, s18, v3")
    def loads(s):
        st = s % ST
        out = []
        order = [0, 5, 1, 2, 3, 4, 6, 7, 8, 9, 10, 11, 12, 13]
        for i in order:
            out.append((f"buffer_load_dwordx4 {sreg(st, i)}, v{vo[s//4]}, s[8:11], s{20+i} offen offset:{(s%4)*1024}{FL[OPT['bnt'] if i < 5 else OPT['wnt']]}", f"L{s}"))
        return out
    A.vq = []
    def bases():
        for w in range(4):
            A.e(f"s_cmp_gt_u32 s3, {w}")
            A.e(f"s_cselect_b32 s18, 1, 0")
            A.e(f"s_sub_u32 s18, s3, s18")
            A.e(f"s_mul_i32 s18, s18, 12288")
            A.e(f"s_add_u32 s18, s18, {w*36864}")
            A.e(f"s_cmp_eq_u32 s3, {w}")
            A.e(f"s_cselect_b32 s18, 147456, s18")
            A.e(f"v_add_u32 v{236+w}, s18, v3")
    A.e(f"s_lshl_b32 s{sPf}, s2, 2")
    A.e(f"s_add_u32 s{sPf}, s{sPf}, s3")
    A.e(f"s_lshl_b32 s{sPf}, s{sPf}, 7")
    A.e(f"s_add_u32 s{sPf}, s{sPf}, 0x4100000")
    mark(A, 240, 8, real=True)
    mark(A, 240, 8)
    for s in range(ST - 1):
        emit_list(A, loads(s))
    if OPT["ept"]: bases()
    wr = [(f"ds_write_b128 v{236 + ti%4}, {a(4*ti,4)} offset:{(ti//4)*1024}", None) for ti in range(45)]
    def last(w):
        s = 31
        order = [ti for ti in range(45) if ti % 4 != w] + [ti for ti in range(45) if ti % 4 == w]
        mf = []
        for ti in order:
            i, qt = ti // 5, ti % 5
            d = a(4*ti, 4)
            mf.append(f"{MF} {d}, {sreg(s%ST, 5+i)}, {sreg(s%ST, qt)}, {d}")
        nw = len([ti for ti in order if ti % 4 != w])
        fill = {}
        spread(fill, [[wr[ti]] for ti in order[:nw]], list(range(3, 3 + nw)))
        A.weave(mf, fill)
        A.e("s_nop 7")
        A.e("s_nop 7")
    for s in range(32 if OPT["ept"] < 2 else 31):
        A.wait([f"L{s}"])
        if s == 0: mark(A, 240, 8)
        mf = []
        for i in range(9):
            for qt in range(5):
                d = a(4*(i*5+qt), 4)
                mf.append(f"{MF} {d}, {sreg(s%ST, 5+i)}, {sreg(s%ST, qt)}, {'0' if s == 0 else d}")
        fill = {}
        if s + ST - 1 < 32:
            spread(fill, [[x] for x in loads(s + ST - 1)], list(range(1, 45, 3)))
        if s == 31 and OPT["ept"]:
            spread(fill, [[x] for x in wr[:41]], list(range(4, 45)))
        A.weave(mf, fill)
    A.e("s_nop 7")
    if OPT["ept"] == 1:
        A.e("s_nop 7")
        emit_list(A, wr[41:])
    mark(A, 240, 8)
    for w in range(4 if not OPT["ept"] else 0):
        A.e(f"s_cmp_eq_u32 s3, {w}")
        A.e(f"s_cbranch_scc1 L_b_skipw{w}")
        A.e(f"s_cmp_gt_u32 s3, {w}")
        A.e(f"s_cselect_b32 s18, 1, 0")
        A.e(f"s_sub_u32 s18, s3, s18")
        A.e(f"s_mul_i32 s18, s18, 12288")
        A.e(f"s_add_u32 s18, s18, {w*36864}")
        A.e("v_add_u32 v4, s18, v3")
        for n, ti in enumerate([ti for ti in range(45) if ti % 4 == w]):
            A.e(f"ds_write_b128 v4, {a(4*ti,4)} offset:{n*1024}")
        A.label(f"L_b_skipw{w}")
    A.e("v_and_b32 v5, 15, v2")
    A.e("v_mul_u32_u24 v5, 1152, v5")
    A.e("v_lshrrev_b32 v6, 4, v2")
    A.e("v_lshl_add_u32 v5, v6, 3, v5")
    A.e(f"s_mul_i32 s18, s16, {80*1152}")
    A.e("s_mul_i32 s19, s17, 288")
    A.e("s_add_u32 s18, s18, s19")
    for qt in range(5):
        A.e(f"s_add_u32 s{20+qt}, s18, {qt*16*1152}")
    A.e("s_mul_i32 s18, s3, 36864")
    A.e("v_add_u32 v232, s18, v3")
    for w in range(4):
        A.e(f"s_cmp_lg_u32 s3, {w}")
        A.e(f"s_cbranch_scc1 L_b_skipr{w}")
        tis = [ti for ti in range(45) if ti % 4 == w]
        if OPT["ept"] == 2:
            A.e("s_waitcnt vmcnt(0)")
            last(w)
        for n, ti in enumerate(tis):
            for r in range(4):
                A.e(f"v_accvgpr_read_b32 v{160+4*n+r}, a{4*ti+r}")
        A.e("s_waitcnt lgkmcnt(0)")
        A.e("s_barrier")
        def rdt(n):
            if n < len(tis):
                for k in range(3):
                    A.e(f"ds_read_b128 {v(8 + 12*n + 4*k, 4)}, v232 offset:{(k*12+n)*1024}")
        for n in range(5): rdt(n)
        for n, ti in enumerate(tis):
            i, qt = ti // 5, ti % 5
            A.e(f"s_waitcnt lgkmcnt({3*min(4, len(tis)-1-n)})")
            rdt(n + 5)
            for r in range(4):
                A.e(f"v_add_f32 v{160+4*n+r}, v{160+4*n+r}, v{8+12*n+r}")
                A.e(f"v_add_f32 v{8+12*n+4+r}, v{8+12*n+4+r}, v{8+12*n+8+r}")
            for r in range(4):
                A.e(f"v_add_f32 v{160+4*n+r}, v{160+4*n+r}, v{8+12*n+4+r}")
            A.e(f"v_cvt_pk_bf16_f32 v{8+12*n}, v{160+4*n}, v{160+4*n+1}")
            A.e(f"v_cvt_pk_bf16_f32 v{8+12*n+1}, v{160+4*n+2}, v{160+4*n+3}")
            A.e(f"buffer_store_dwordx2 {v(8+12*n,2)}, v5, s[12:15], s{20+qt} offen offset:{32*i}{FL[OPT['ont']]}")
        A.label(f"L_b_skipr{w}")
    mark(A, 240, 8)
    mark(A, 240, 8, real=True)
    A.label("L_b_done")
    A.e("s_endpgm")

def kd(name, vg, acc):
    return f""".amdhsa_kernel {name}
  .amdhsa_next_free_vgpr {vg}
  .amdhsa_next_free_sgpr 96
  .amdhsa_accum_offset {acc}
  .amdhsa_group_segment_fixed_size 0
  .amdhsa_kernarg_size 64
  .amdhsa_user_sgpr_count 2
  .amdhsa_user_sgpr_kernarg_segment_ptr 1
  .amdhsa_system_sgpr_workgroup_id_x 1
.end_amdhsa_kernel
"""

def main():
    A = Asm()
    kernel_a(A)
    kernel_b(A)
    head = f"""; MHA block with KV cache: attn_kernel (Q-proj + attention -> ws), oproj_kernel (O-proj). Generated by work/gen.py
; @launch kernel=attn_kernel grid=(256,1,1) block=(256,1,1) lds=163840
; @launch kernel=oproj_kernel grid=(256,1,1) block=(256,1,1) lds=163840
.amdgcn_target "amdgcn-amd-amdhsa--gfx950"
.text
.globl attn_kernel
.type attn_kernel,@function
.globl oproj_kernel
.type oproj_kernel,@function
"""
    tail = '.section .rodata,"a"\n.p2align 6\n' + kd("attn_kernel", 512, 256) + ".p2align 6\n" + kd("oproj_kernel", 512, 256)
    open(sys.argv[1], "w").write(head + "\n".join(A.lines) + "\n" + tail)

main()
```
